```python
import torch

def _softmax(x, axis=-1):
    return torch.softmax(x, dim=axis)

def _gelu(x):
    return torch.nn.functional.gelu(x, approximate='tanh')

def _silu(x):
    return torch.nn.functional.silu(x)

def _sigmoid(x):
    return torch.sigmoid(x)

def _layernorm(x, axis=-1, eps=1e-05):
    m = x.mean(dim=axis, keepdim=True)
    v = x.var(dim=axis, keepdim=True, unbiased=False)
    return (x - m) / torch.sqrt(v + eps)

def _scatter_add(tgt, idx, src, axis=0):
    return tgt.clone().index_add_(axis, idx, src)

def _segment_sum(src, seg, n):
    out = torch.zeros((n,) + src.shape[1:], dtype=src.dtype)
    return out.index_add_(0, seg, src)

def _pad(x, pw):
    flat = tuple((v for pair in reversed(pw) for v in pair))
    return torch.nn.functional.pad(x, flat)
kernel_name = 'adaLN_cond__sliding_block_cached__mixer_channel_mlp__decode'

def setup_inputs():

    _w = lambda a: (lambda t: t.to(torch.bfloat16) if t.is_floating_point() else t)(torch.as_tensor(a))

    def _A_setup():
        B, Sq, D = (1, 1, 576)
        Hq, Hkv, Sk, Dh = (32, 16, 32768, 128)
        assert Hq % Hkv == 0, (Hq, Hkv)
        return {'x': _w((lambda *s: torch.randn(*s, dtype=torch.bfloat16) * 0.1)(B, Sq, D)), 'k_cache': _w((lambda *s: torch.randn(*s, dtype=torch.bfloat16) * 0.8)(B, Hkv, Sk, Dh)), 'v_cache': _w((lambda *s: torch.randn(*s, dtype=torch.bfloat16) * 0.8)(B, Hkv, Sk, Dh)), 'wq': _w((lambda *s: torch.randn(*s, dtype=torch.bfloat16) * 0.8)(D, Hq * Dh) * D ** (-0.5)), 'wo': _w((lambda *s: torch.randn(*s, dtype=torch.bfloat16) * 0.8)(Hq * Dh, D) * (Hq * Dh) ** (-0.5))}
    _A_in = _A_setup()

    def _B_setup():
        B, S, D, F = (1, 1, 576, 4608)
        return {'x': _w((lambda *s: torch.randn(*s, dtype=torch.bfloat16) * 0.1)(B, S, D)), 'w1': _w((lambda *s: torch.randn(*s, dtype=torch.bfloat16) * 3.2)(D, F) * D ** (-0.5)), 'b1': _w((lambda *s: torch.randn(*s, dtype=torch.bfloat16) * 3.2)(F)), 'w2': _w((lambda *s: torch.randn(*s, dtype=torch.bfloat16) * 1.6)(F, D) * F ** (-0.5)), 'b2': _w((lambda *s: torch.randn(*s, dtype=torch.bfloat16) * 1.6)(D))}
    _B_in = _B_setup()
    return {'A_x': _A_in['x'], 'A_k_cache': _A_in['k_cache'], 'A_v_cache': _A_in['v_cache'], 'A_wq': _A_in['wq'], 'A_wo': _A_in['wo'], 'B_x': _B_in['x'], 'B_w1': _B_in['w1'], 'B_b1': _B_in['b1'], 'B_w2': _B_in['w2'], 'B_b2': _B_in['b2'], 'c': _w((lambda *s: torch.randn(*s, dtype=torch.bfloat16) * 0.4)(1, 576) * 8.0), 'w_mod': _w((lambda *s: torch.randn(*s, dtype=torch.bfloat16) * 0.4)(576, 6 * 576) * 576 ** (-0.5) * 8.0)}

def reference(A_x, A_k_cache, A_v_cache, A_wq, A_wo, B_x, B_w1, B_b1, B_w2, B_b2, c, w_mod):

    def _A_ref(x, k_cache, v_cache, wq, wo):
        B, Sq, D = x.shape
        Hq, Dh = (32, 128)
        Hkv, Sk = (k_cache.shape[1], k_cache.shape[2])
        W = min(4096, max(256, Sk // 4))
        rep = Hq // Hkv
        q = (lambda x, *d: x.permute(*d))((x @ wq).reshape(B, Sq, Hq, Dh), 0, 2, 1, 3)
        k = (lambda x, n, axis: torch.repeat_interleave(x, n, dim=axis))(k_cache[:, :, Sk - W:, :], rep, axis=1)
        v = (lambda x, n, axis: torch.repeat_interleave(x, n, dim=axis))(v_cache[:, :, Sk - W:, :], rep, axis=1)
        scores = torch.einsum('bhqd,bhkd->bhqk', q, k) * Dh ** (-0.5)
        p = _softmax(scores, axis=-1)
        o = torch.einsum('bhqk,bhkd->bhqd', p, v)
        return (lambda x, *d: x.permute(*d))(o, 0, 2, 1, 3).reshape(B, Sq, Hq * Dh) @ wo

    def _B_ref(x, w1, b1, w2, b2):
        y = _layernorm(x, axis=-1)
        h = _gelu(torch.einsum('bsd,df->bsf', y, w1) + b1)
        return torch.einsum('bsf,fd->bsd', h, w2) + b2
    x = A_x
    mod = (_silu(c) @ w_mod).reshape(c.shape[0], 6, 1, -1)
    sa, ca, ga, sb, cb, gb = (mod[:, 0].clone(), mod[:, 1].clone(), mod[:, 2].clone(), mod[:, 3].clone(), mod[:, 4].clone(), mod[:, 5].clone())
    h = _layernorm(x, axis=-1) * (1 + ca) + sa
    x = x + ga * _A_ref(h, A_k_cache, A_v_cache, A_wq, A_wo)
    h = _layernorm(x, axis=-1) * (1 + cb) + sb
    x = x + gb * _B_ref(h, B_w1, B_b1, B_w2, B_b2)
    return x
```

```python
import re

TRANS = ("v_exp_f32", "v_log_f32", "v_rcp_f32", "v_rsq_f32", "v_sqrt_f32", "v_sin_f32", "v_cos_f32")


def regs_of(tok):
    tok = tok.strip()
    tok = tok.lstrip("-")
    m = re.fullmatch(r"(?:abs\(|\|)?([vsa])(\d+)(?:\)|\|)?", tok)
    if m:
        return [(m.group(1), int(m.group(2)))]
    m = re.fullmatch(r"([vsa])\[(\d+):(\d+)\]", tok)
    if m:
        return [(m.group(1), r) for r in range(int(m.group(2)), int(m.group(3)) + 1)]
    if tok in ("vcc", "vcc_lo", "vcc_hi"):
        return [("s", "vcc")]
    if tok in ("exec", "exec_lo", "exec_hi"):
        return [("s", "exec")]
    if tok == "m0":
        return [("s", "m0")]
    return []


class Ins:
    def __init__(self, text):
        self.text = text
        t = text.split(";")[0].strip()
        self.op = t.split()[0]
        rest = t[len(self.op):].strip()
        ops, depth, cur = [], 0, ""
        for ch in rest:
            if ch == "[":
                depth += 1
            if ch == "]":
                depth -= 1
            if ch == "," and depth == 0:
                ops.append(cur.strip())
                cur = ""
            else:
                cur += ch
        if cur.strip():
            ops.append(cur.strip())
        mods = ""
        if ops:
            parts = ops[-1].split(None, 1)
            ops[-1] = parts[0]
            mods = parts[1] if len(parts) > 1 else ""
        self.ops, self.mods = ops, mods
        op = self.op
        self.is_mfma = op.startswith("v_mfma")
        self.is_valu = op.startswith("v_") and not self.is_mfma
        self.is_vmem = op.startswith(("buffer_", "global_"))
        self.is_ds = op.startswith("ds_")
        self.is_salu = op.startswith("s_")
        self.is_dpp = "_dpp" in op
        self.is_perml = op.startswith("v_permlane")
        self.is_trans = op.replace("_e32", "").replace("_e64", "") in TRANS
        self.is_lane = op.startswith(("v_readlane", "v_readfirstlane", "v_writelane"))
        R = [regs_of(o) for o in ops]
        w, r = [], []
        if self.is_mfma:
            w = R[0]
            r = R[1] + R[2] + R[3]
            self.ab = R[1] + R[2]
            self.c = R[3]
        elif self.is_valu:
            if self.is_perml:
                w = R[0] + R[1]
                r = R[0] + R[1]
            elif op.startswith("v_cmp"):
                w = R[0]
                r = sum(R[1:], [])
            else:
                w = R[0]
                r = sum(R[1:], [])
                if op.startswith(("v_fmac", "v_dot2c", "v_writelane")) or self.is_dpp:
                    r = r + R[0]
                if op.startswith(("v_add_co", "v_addc_co", "v_sub_co")):
                    w = R[0] + R[1]
                    r = sum(R[2:], [])
        elif self.is_vmem:
            if "_load" in op:
                if "lds" in mods.split():
                    r = sum(R, [])
                else:
                    w = R[0]
                    r = sum(R[1:], [])
            else:
                r = sum(R, [])
        elif self.is_ds:
            if op.startswith(("ds_read", "ds_bpermute", "ds_permute", "ds_swizzle")) or "_rtn" in op:
                w = R[0]
                r = sum(R[1:], [])
            else:
                r = sum(R, [])
        elif self.is_salu:
            if op.startswith(("s_cmp", "s_cbranch", "s_branch", "s_waitcnt", "s_nop", "s_barrier", "s_sleep",
                              "s_setprio", "s_endpgm", "s_bitcmp")):
                r = sum(R, [])
            else:
                w = R[0] if R else []
                r = sum(R[1:], [])
        self.w, self.r = set(w), set(r)
        self.dpp_src = set(R[1]) if self.is_dpp and len(R) > 1 else set()
        self.wide_store = self.is_vmem and "store" in op and op.endswith(("x3", "x4"))
        self.store_data = set()
        if self.wide_store:
            self.store_data = set(R[0]) if op.startswith("buffer_") else set(R[1])
        self.states = 1
        if op == "s_nop":
            self.states = int(ops[0], 0) + 1


def need(p, c):
    n = 0
    vw = {x for x in p.w if x[0] in "va"}
    sw = {x for x in p.w if x[0] == "s"}
    if p.is_valu:
        if c.is_mfma and vw & c.r:
            n = max(n, 2)
        if c.is_dpp and vw & c.dpp_src:
            n = max(n, 2)
        if c.is_perml and vw & c.r:
            n = max(n, 2)
        if c.is_lane and vw & c.r:
            n = max(n, 1)
        if p.is_trans and c.is_valu and vw & c.r:
            n = max(n, 1)
        if sw:
            if c.is_valu and (sw & c.r or (("s", "vcc") in sw and c.op.startswith("v_cndmask") and len(c.ops) == 4 and c.ops[3] == "vcc")):
                n = max(n, 4 if c.is_lane else 2)
            if c.is_vmem and sw & c.r:
                n = max(n, 5)
            if ("s", "exec") in sw and (c.is_dpp or c.is_mfma or c.is_lane or c.is_perml):
                n = max(n, 5)
    if p.is_mfma:
        passes = 8 if "32x32" in p.op else 4
        big = {4: 8, 8: 12}[passes]
        if c.is_mfma:
            if vw & set(c.ab):
                n = max(n, big)
            if vw & set(c.c) and set(c.c) != vw:
                n = max(n, big - 2)
            if vw & c.w and set(c.c) != vw:
                n = max(n, big)
        elif vw & (c.r | c.w):
            n = max(n, big)
        if c.is_valu and set(p.c) & c.w:
            n = max(n, {4: 3, 8: 7}[passes])
    if p.wide_store and (c.is_valu or c.is_mfma) and p.store_data & c.w:
        n = max(n, 2)
    if p.is_salu and ("s", "m0") in p.w and c.is_vmem and ("lds" in c.mods.split() or "_lds_" in c.op):
        n = max(n, 1)
    return n


class Asm:
    def __init__(self):
        self.lines = []
        self.hist = []
        self.nops = 0

    def raw(self, text):
        self.lines.append(text)

    def label(self, name):
        self.lines.append(name + ":")

    def __call__(self, text):
        for t in text.split("\n"):
            t = t.strip()
            if not t or t.startswith(";"):
                continue
            if t.endswith(":"):
                self.label(t[:-1])
                continue
            ins = Ins(t)
            dist, pad = 0, 0
            for p in reversed(self.hist):
                k = need(p, ins)
                if k > dist:
                    pad = max(pad, k - dist)
                dist += p.states
                if dist >= 20:
                    break
            if pad:
                nop = Ins(f"s_nop {pad - 1}")
                self.lines.append("    " + nop.text)
                self.hist.append(nop)
                self.nops += 1
            self.lines.append("    " + t)
            self.hist.append(ins)
            if ins.op in ("s_branch", "s_endpgm", "s_setpc_b64"):
                self.hist = []
            self.hist = self.hist[-24:]

    def fence(self):
        self("s_nop 7")

    def text(self):
        return "\n".join(self.lines) + "\n"
```

```python
import sys, struct, os
sys.path.insert(0, os.path.dirname(os.path.abspath(__file__)))
from asmlib import Asm

NAME = "adaLN_cond__sliding_block_cached__mixer_channel_mlp__decode"


def f2u(x):
    return struct.unpack("<I", struct.pack("<f", x))[0]


def hx(x):
    return "0x%08x" % (x & 0xffffffff)


LOG2E = 1.4426950408889634
EP, XI, MP, ML, QB, AP, OP, FP, STAMP = 0, 256, 4096, 59392, 77824, 94208, 112640, 333824, 1 << 20
MPS = 3456 * 4
OPSLOT = 1152
A_CNT, A_NEG, A_ST, A_QL, A_CMB, A_XS, A_F1P, A_U, A_AA, A_BB, A_STAT, A_ZERO = 0, 16, 32, 128, 2176, 6272, 7808, 11904, 14208, 16512, 18816, 19712
W_XS, W_HS, W_RED, W_RED2, W_FIN, W_NX = 0, 512, 2560, 4608, 6656, 7168
LDS_BYTES = 19712 + 1024
SPIN_MAX = 40000

P_X, P_K, P_V, P_WQ, P_WO, P_W1, P_B1, P_W2, P_B2, P_C, P_WM, P_OUT, P_WS = 8, 10, 12, 14, 16, 20, 22, 24, 26, 28, 30, 32, 36
S_WAVE, S_X, S_U, S_T, S_SELA = 40, 41, 42, 43, 44
SA, SB, SC, SW = 48, 52, 56, 60
S_TB = 92
S_BAD = 66
S_CNT = 68


def STB(k):
    return (80, 82, 84, 86, 88, 90, 96, 98, 100, 64)[k]


class G:
    def __init__(self, stamps=False, fast=True, opt=None):
        self.a = Asm()
        self.stamps = stamps
        self.fast = fast
        self.opt = opt or {}
        self.nlab = 0
        self.cold = []
        self.in_w = False

    def lab(self, base):
        self.nlab += 1
        return f"L_{base}_{self.nlab}"

    def srd(self, d, p, size, add=None):
        a = self.a
        if add is None:
            a(f"s_mov_b32 s{d}, s{p}\ns_mov_b32 s{d+1}, s{p+1}")
        else:
            a(f"s_add_u32 s{d}, s{p}, {add}\ns_addc_u32 s{d+1}, s{p+1}, 0")
        a(f"s_mov_b32 s{d+2}, {size}\ns_mov_b32 s{d+3}, 0x20000")

    def fstamp(self, k):
        if self.stamps and self.opt.get("front"):
            self.a(f"s_memrealtime s[{STB(k)}:{STB(k)+1}]")

    def stamp(self, k):
        if self.stamps and not (self.opt.get("front") and k >= 5 and self.in_w):
            self.a(f"s_memrealtime s[{STB(k)}:{STB(k)+1}]")

    def dump_stamps(self):
        if not self.stamps:
            return
        a = self.a
        a("s_waitcnt lgkmcnt(0)")
        a(f"s_lshl_b32 s38, s2, 3\ns_add_u32 s38, s38, s{S_WAVE}\ns_lshl_b32 s38, s38, 6\ns_add_u32 s38, s38, {STAMP}")
        a("s_mov_b64 exec, 1\nv_mov_b32 v2, 0")
        for k in range(10):
            a(f"v_mov_b32 v3, s{STB(k)}")
            a(f"buffer_store_dword v3, v2, s[{SW}:{SW+3}], s38 offen offset:{4*k}")
        a("s_getreg_b32 s39, hwreg(HW_REG_XCC_ID)\nv_mov_b32 v3, s39")
        a(f"buffer_store_dword v3, v2, s[{SW}:{SW+3}], s38 offen offset:40")

    def tag_setup(self, vT):
        a = self.a
        a("s_waitcnt lgkmcnt(0)")
        a(f"s_add_u32 s{S_T}, s{S_T}, 0x01010101")
        for k in range(4):
            a(f"s_mov_b32 s{4+k}, {hx(0x07060500 + k)}")
            a(f"s_bfe_u32 s{S_TB+k}, s{S_T}, {hex(0x80000 + 8 * k)}")
        a(f"v_mov_b32 v{vT}, s{S_T}")

    def tag4(self, d, vT):
        for k in range(4):
            self.a(f"v_perm_b32 v{d+k}, v{d+k}, v{vT}, s{4+k}")

    def tagbyte(self, vd, vsel, vT):
        a = self.a
        a(f"v_lshlrev_b32 v{vd}, 3, v{vsel}\nv_lshrrev_b32 v{vd}, v{vd}, v{vT}\nv_and_b32 v{vd}, 0xff, v{vd}")

    def clean(self, grans, words, vtb, acc, waits=None):
        a = self.a
        regs = []
        pend = []
        first = True

        def fold():
            nonlocal first
            while len(pend) >= (3 if first else 2):
                if first:
                    a(f"v_or3_b32 v{acc}, v{pend[0]}, v{pend[1]}, v{pend[2]}")
                    del pend[:3]
                    first = False
                else:
                    a(f"v_or3_b32 v{acc}, v{acc}, v{pend[0]}, v{pend[1]}")
                    del pend[:2]
        n = 0
        for d in grans:
            if waits:
                a(f"s_waitcnt vmcnt({waits[n]})")
            n += 1
            for k in range(4):
                a(f"v_xor_b32 v{d+k}, s{S_TB+k}, v{d+k}")
                pend.append(d + k)
            fold()
        for d in words:
            if waits:
                a(f"s_waitcnt vmcnt({waits[n]})")
            n += 1
            a(f"v_xor_b32 v{d}, v{vtb}, v{d}")
            pend.append(d)
            fold()
        if first:
            assert len(pend) == 2
            a(f"v_or_b32 v{acc}, v{pend[0]}, v{pend[1]}")
            pend = []
        for r in pend:
            a(f"v_or_b32 v{acc}, v{acc}, v{r}")
        a(f"v_and_b32 v{acc}, 0xff, v{acc}")
        a(f"v_cmp_ne_u32 vcc, 0, v{acc}")

    def sel_setup(self, sel, t0, t1, t2):
        a = self.a
        a(f"v_bfe_u32 v{t0}, v0, 3, 1")
        a(f"v_mul_u32_u24 v{t0}, 0x202, v{t0}\nv_add_u32 v{t0}, 0x100, v{t0}")
        a(f"v_and_b32 v{t1}, 1, v0\nv_lshlrev_b32 v{t1}, 4, v{t1}")
        a(f"v_lshlrev_b32 v{t0}, v{t1}, v{t0}")
        a(f"v_mov_b32 v{t2}, 0x0c0c0000\nv_lshrrev_b32 v{t1}, v{t1}, v{t2}\nv_or_b32 v{t0}, v{t0}, v{t1}")
        a(f"v_bfe_u32 v{t1}, v0, 1, 2\nv_mov_b32 v{t2}, 0x0c0c0c0c")
        for d in range(4):
            a(f"v_cmp_eq_u32 vcc, {d}, v{t1}\nv_cndmask_b32 v{sel+d}, v{t2}, v{t0}, vcc")

    def diag(self, A, x, sel):
        for d in range(4):
            self.a(f"v_perm_b32 v{A+d}, v{x}, v{x}, v{sel+d}")

    def mfma(self, D, A, B, first):
        c = "0" if first else f"v[{D}:{D+3}]"
        self.a(f"v_mfma_f32_16x16x32_bf16 v[{D}:{D+3}], v[{A}:{A+3}], v[{B}:{B+3}], {c}")

    def dpp(self, op, d, s0, s1, ctl, rm=0xf, bm=0xf):
        if s1 is None:
            self.a(f"{op}_dpp v{d}, v{s0} {ctl} row_mask:{hex(rm)} bank_mask:{hex(bm)}")
        else:
            self.a(f"{op}_dpp v{d}, v{s0}, v{s1} {ctl} row_mask:{hex(rm)} bank_mask:{hex(bm)}")

    def xrow_all(self, op, regs, tmps):
        a = self.a
        for sw in ("v_permlane16_swap_b32", "v_permlane32_swap_b32"):
            for r, t in zip(regs, tmps):
                a(f"v_mov_b32 v{t}, v{r}")
            for r, t in zip(regs, tmps):
                a(f"{sw} v{t}, v{r}")
            for r, t in zip(regs, tmps):
                a(f"{op} v{r}, v{r}, v{t}")

    def row_all(self, op, regs, steps=("quad_perm:[1,0,3,2]", "quad_perm:[2,3,0,1]", "row_half_mirror", "row_mirror")):
        for st in steps:
            for r in regs:
                self.dpp(op, r, r, r, st)

    def rscatter(self, c):
        a = self.a
        a(f"v_permlane32_swap_b32 v{c}, v{c+2}\nv_permlane32_swap_b32 v{c+1}, v{c+3}")
        a(f"v_add_f32 v{c}, v{c}, v{c+2}\nv_add_f32 v{c+1}, v{c+1}, v{c+3}")
        a(f"v_permlane16_swap_b32 v{c}, v{c+1}\nv_add_f32 v{c}, v{c}, v{c+1}")

    def fold2(self, D, t):
        a = self.a
        for r in range(4):
            a(f"v_permlane32_swap_b32 v{D+r}, v{t+r}")
        for r in range(4):
            self.dpp("v_add_f32", D + r, t + r, D + r, "row_ror:8")

    def rnd2(self, x, y, t):
        a = self.a
        a(f"v_cvt_pk_bf16_f32 v{t}, v{x}, v{y}\nv_lshlrev_b32 v{x}, 16, v{t}\nv_and_b32 v{y}, 0xffff0000, v{t}")

    def rnd1(self, x):
        a = self.a
        a(f"v_cvt_pk_bf16_f32 v{x}, v{x}, v{x}\nv_and_b32 v{x}, 0xffff0000, v{x}")

    def silu_to_lds(self, c, vaddr, t):
        a = self.a
        for k in range(3):
            a(f"v_lshlrev_b32 v{c+k}, 16, v{c+k}")
        for k in range(3):
            a(f"v_mul_f32 v{t+k}, {hx(f2u(-LOG2E))}, v{c+k}")
        for k in range(3):
            a(f"v_exp_f32 v{t+k}, v{t+k}")
        for k in range(3):
            a(f"v_add_f32 v{t+k}, 1.0, v{t+k}")
        for k in range(3):
            a(f"v_rcp_f32 v{t+k}, v{t+k}")
        for k in range(3):
            a(f"v_mul_f32 v{c+k}, v{c+k}, v{t+k}")
        a(f"v_cvt_pk_bf16_f32 v{t}, v{c}, v{c+1}\nv_cvt_pk_bf16_f32 v{t+1}, v{c+2}, v{c+2}")
        a(f"ds_write_b16 v{vaddr}, v{t}\nds_write_b16_d16_hi v{vaddr}, v{t} offset:128\nds_write_b16 v{vaddr}, v{t+1} offset:256")

    def code_prefetch(self, vd, vt, n):
        a = self.a
        a("s_getpc_b64 s[38:39]")
        lab = self.lab("pc")
        a.label(lab)
        a(f"s_sub_u32 s38, s38, {lab}-{NAME}_kernel\ns_subb_u32 s39, s39, 0")
        a(f"v_lshlrev_b32 v{vt}, 7, v0")
        for k in range(n):
            if k + 1 == n:
                a(f"v_min_u32 v{vt}, L_end-{NAME}_kernel, v{vt}")
            a(f"global_load_dword v{vd+k}, v{vt}, s[38:39]")
            if k + 1 < n:
                a(f"v_add_u32 v{vt}, 8192, v{vt}")

    def build(self):
        a = self.a
        a.raw(f"{NAME}_kernel:")
        self.stamp(0)
        a("s_cmp_ge_u32 s2, 256\ns_cbranch_scc1 L_end")
        a("s_load_dwordx16 s[8:23], s[0:1], 0\ns_load_dwordx8 s[24:31], s[0:1], 64")
        a("s_load_dwordx4 s[32:35], s[0:1], 96\ns_load_dwordx2 s[36:37], s[0:1], 112")
        a(f"v_lshrrev_b32 v1, 6, v0\nv_and_b32 v0, 63, v0\nv_readfirstlane_b32 s{S_WAVE}, v1")
        a(f"s_and_b32 s{S_X}, s2, 7\ns_lshr_b32 s{S_U}, s2, 3")
        a("v_and_b32 v1, 15, v0\nv_lshrrev_b32 v2, 4, v0")
        a(f"s_cmp_lt_u32 s{S_U}, 9\ns_cbranch_scc1 L_w")
        a(f"s_cmp_ge_u32 s{S_WAVE}, 4\ns_cbranch_scc1 L_mlpw")
        self.att()
        self.mlpw()
        self.s4_and_mlp()
        self.wcu()
        k = 0
        while k < len(self.cold):
            self.cold[k]()
            k += 1
        a.label("L_end")
        a("s_endpgm")
        return a.text()

    def ws_setup(self):
        a = self.a
        a(f"s_load_dword s{S_T}, s[{P_WS}:{P_WS+1}], {EP}")
        self.srd(SW, P_WS, 2 << 20)

    def const_addr(self, boff, va, vx):
        a = self.a
        a(f"v_mul_u32_u24 v{va}, {MPS}, v2\nv_lshl_add_u32 v{va}, v1, 4, v{va}\nv_add_u32 v{va}, s{boff}, v{va}")
        a(f"v_lshlrev_b32 v{vx}, 3, v1\nv_lshl_add_u32 v{vx}, v2, 1, v{vx}\ns_lshr_b32 s38, s{boff}, 1\nv_add_u32 v{vx}, s38, v{vx}")

    def const_loads(self, R, va, vx, pre=None):
        a = self.a
        a(f"s_mov_b32 s38, {MP+4608}\ns_mov_b32 s39, {MP+9216}")
        L = [f"buffer_load_dwordx4 v[{R}:{R+3}], v{va}, s[{SW}:{SW+3}], s38 offen sc1",
             f"buffer_load_dwordx4 v[{R+4}:{R+7}], v{va}, s[{SW}:{SW+3}], s38 offen offset:2304 sc1",
             f"buffer_load_dwordx4 v[{R+8}:{R+11}], v{va}, s[{SW}:{SW+3}], s39 offen sc1"]
        if vx is not None:
            L.append(f"buffer_load_ushort v{R+12}, v{vx}, s[{SC}:{SC+3}], 0 offen")
        for t in L:
            if pre:
                pre()
            a(t)

    def att(self):
        a = self.a
        KR, VR, Q1, Q2, QA, QM, D, O, SEL, PP, X0, A0, A1 = 8, 104, 200, 204, 208, 216, 224, 236, 240, 244, 247, 248, 252
        XIr = 216
        vT = 7
        DEP = self.opt.get("dep", 5)
        BUR = self.opt.get("bur", 12)
        QP1, QP2 = self.opt.get("qp1", 4), self.opt.get("qp2", 10)
        a("s_setprio 2")
        a(f"s_sub_u32 s45, s{S_U}, 9\ns_lshl_b32 s46, s45, 2\ns_add_u32 s46, s46, s{S_WAVE}")
        a("s_sub_u32 s69, s46, 46\ns_cmp_ge_u32 s46, 46\ns_cselect_b32 s46, s69, s46\ns_cselect_b32 s47, 1, 0")
        a("s_mul_i32 s38, s46, 11\ns_min_u32 s39, s46, 6\ns_add_u32 s38, s38, s39")
        a("s_cmp_lt_u32 s46, 6\ns_cselect_b32 s3, 12, 11")
        a(f"s_lshl_b32 s46, s{S_X}, 1\ns_add_u32 s46, s46, s47")
        a("s_lshl_b32 s38, s38, 11\ns_lshl_b32 s69, s46, 23\ns_add_u32 s38, s38, s69\ns_add_u32 s38, s38, 7340032")
        a("s_lshl_b32 s39, s3, 11")
        for k in range(5):
            a(f"s_mov_b32 s{70+k}, {4096*(k+1)}")
        a("v_lshrrev_b32 v3, 1, v1\nv_lshlrev_b32 v3, 8, v3\nv_and_b32 v4, 1, v1\nv_lshlrev_b32 v4, 6, v4")
        a("v_add_u32 v3, v3, v4\nv_lshl_add_u32 v3, v2, 4, v3")
        a("v_mul_u32_u24 v4, 6144, v2\nv_lshl_add_u32 v4, v1, 4, v4")
        a(f"s_lshl_b32 s69, s46, 10\ns_add_u32 s69, s69, {QB}\nv_lshlrev_b32 v5, 4, v0")
        a("v_min_u32 v6, 8, v0\nv_lshlrev_b32 v6, 4, v6")
        a(f"s_lshl_b32 s75, s{S_X}, 8\ns_add_u32 s75, s75, {XI}")
        a("s_waitcnt lgkmcnt(0)")
        self.srd(SA, P_K, "s39", add="s38")
        n = [0]

        def thr():
            if n[0] >= DEP:
                a(f"s_waitcnt vmcnt({DEP-1})")
            n[0] += 1
        for k in range(12):
            if k == 3:
                self.srd(SB, P_V, "s39", add="s38")
                self.ws_setup()
                self.srd(SC, P_X, 1152)
            if k == 11:
                a("s_cmp_eq_u32 s3, 12\ns_cbranch_scc0 L_att_k11")
            for lam in range(2):
                r = KR + 8 * k + 4 * lam
                so = "0" if k < 2 else f"s{69 + k // 2}"
                thr()
                a(f"buffer_load_dwordx4 v[{r}:{r+3}], v3, s[{SA}:{SA+3}], {so} offen offset:{(k & 1) * 2048 + lam * 128} nt")
        a.label("L_att_k11")
        after = {}
        n_extra1 = 2 if self.fast else 1
        for t in range(24):
            if t == QP1:
                a(f"buffer_load_dwordx4 v[{Q1}:{Q1+3}], v5, s[{SW}:{SW+3}], s69 offen sc1")
                if self.fast:
                    a(f"buffer_load_dwordx4 v[{XIr}:{XIr+3}], v6, s[{SW}:{SW+3}], s75 offen sc1")
            if t == QP2:
                a(f"buffer_load_dwordx4 v[{Q2}:{Q2+3}], v5, s[{SW}:{SW+3}], s69 offen sc1")
            r = VR + 4 * t
            so = "0" if t < 16 else "s70"
            if t < BUR:
                thr()
            a(f"buffer_load_dwordx4 v[{r}:{r+3}], v4, s[{SB}:{SB+3}], {so} offen offset:{(t & 15) * 256} nt")
            after[t] = (23 - t) + (n_extra1 if t < QP1 else 0) + (1 if t < QP2 else 0)
        self.stamp(1)
        a("s_barrier")
        self.tag_setup(vT)
        self.sel_setup(SEL, 3, 4, 6)
        a(f"s_waitcnt vmcnt({24 - QP1 + 1})")
        if self.fast:
            a("s_getreg_b32 s76, hwreg(HW_REG_XCC_ID, 0, 4)\ns_lshl_b32 s76, s76, 8")
            for k in range(4):
                a(f"v_xor_b32 v{XIr+k}, s{S_TB+k}, v{XIr+k}")
            a(f"v_xor_b32 v{XIr}, s76, v{XIr}\nv_or3_b32 v4, v{XIr+1}, v{XIr+2}, v{XIr+3}\nv_and_b32 v4, 0xff, v4\nv_or_b32 v4, v4, v{XIr}")
            a("v_cmp_ne_u32 vcc, 0, v4\ns_cmp_eq_u64 vcc, 0\ns_cselect_b32 s76, 1, 0")
        self.clean([Q1], [], None, 4)
        a("s_cbranch_vccnz L_q_second")
        a.label("L_qok")

        def cold_q():
            a.label("L_q_second")
            a(f"s_waitcnt vmcnt({24 - QP2})")
            for k in range(4):
                a(f"v_mov_b32 v{Q1+k}, v{Q2+k}")
            self.clean([Q1], [], None, 4)
            a("s_cbranch_vccz L_qok")
            a(f"s_mov_b32 s{S_CNT}, 0")
            a.label("L_q_loop")
            a(f"buffer_load_dwordx4 v[{Q1}:{Q1+3}], v5, s[{SW}:{SW+3}], s69 offen sc1")
            a("s_waitcnt vmcnt(0)")
            self.clean([Q1], [], None, 4)
            a("s_cbranch_vccz L_qok")
            a(f"s_sleep 1\ns_add_u32 s{S_CNT}, s{S_CNT}, 1\ns_cmp_lt_u32 s{S_CNT}, {SPIN_MAX}\ns_cbranch_scc1 L_q_loop\ns_branch L_qok")
        self.cold.append(cold_q)
        self.stamp(2)
        a("s_mov_b32 s38, 0x07060302")
        a(f"v_perm_b32 v4, v{Q1+1}, v{Q1}, s38\nv_perm_b32 v5, v{Q1+3}, v{Q1+2}, s38")
        a(f"s_lshl_b32 s38, s{S_WAVE}, 9\ns_add_u32 s38, s38, {A_QL}")
        a("v_lshl_add_u32 v3, v0, 3, s38\nds_write_b64 v3, v[4:5]")
        a("v_bfe_u32 v3, v0, 1, 1\nv_lshlrev_b32 v3, 8, v3\nv_and_b32 v6, 1, v0\nv_lshl_add_u32 v3, v6, 6, v3")
        a("v_lshl_add_u32 v3, v2, 4, v3\nv_add_u32 v3, s38, v3")
        a(f"ds_read_b128 v[{QA}:{QA+3}], v3\nds_read_b128 v[{QA+4}:{QA+7}], v3 offset:128")
        a("s_mov_b32 s78, 0x000f000f\ns_mov_b32 s79, 0x000f000f")
        a("s_waitcnt lgkmcnt(0)")
        for m in range(4):
            for d in range(8):
                a(f"v_cndmask_b32 v{QM+d}, 0, v{QA+d}, s[78:79]")
            if m < 3:
                a("s_lshl_b64 s[78:79], s[78:79], 4")
            for c in range(3):
                k = 3 * m + c
                if k == 11:
                    a("s_cmp_eq_u32 s3, 12\ns_cbranch_scc0 L_att_m11")
                for lam in range(2):
                    self.mfma(D + 4 * c, QM + 4 * lam, KR + 8 * k + 4 * lam, m == 0 and lam == 0)
        a.label("L_att_m11")
        a(f"s_lshl_b32 s77, s{S_WAVE}, 8")
        self.const_addr(77, 54, 55)
        self.const_loads(40, 54, 55)
        S, Y = 8, 12
        a("s_mov_b32 s78, 0xaaaaaaaa\ns_mov_b32 s79, 0xaaaaaaaa")
        a("v_mul_u32_u24 v3, 3, v2")
        a("s_nop 3")
        for c in range(3):
            a(f"v_cndmask_b32 v{Y+c}, v{D+4*c+2}, v{D+4*c+1}, s[78:79]\nv_cndmask_b32 v{S+c}, v{D+4*c}, v{D+4*c+3}, s[78:79]")
        for c in range(3):
            self.dpp("v_add_f32", S + c, Y + c, S + c, "quad_perm:[1,0,3,2]")
        self.rnd2(S, S + 1, Y)
        self.rnd1(S + 2)
        for c in range(3):
            a(f"v_mul_f32 v{S+c}, {hx(f2u(128 ** -0.5))}, v{S+c}")
        self.rnd2(S, S + 1, Y)
        self.rnd1(S + 2)
        a(f"v_mov_b32 v4, 0xff800000\ns_sub_u32 s38, s3, 2\nv_cmp_gt_i32 vcc, s38, v3\nv_cndmask_b32 v{S+2}, v4, v{S+2}, vcc")
        MX, LS = 16, 17
        a(f"v_max3_f32 v{MX}, v{S}, v{S+1}, v{S+2}")
        par = ("quad_perm:[2,3,0,1]", "row_ror:4", "row_ror:8")
        self.row_all("v_max_f32", [MX], par)
        self.xrow_all("v_max_f32", [MX], [18])
        for c in range(3):
            a(f"v_sub_f32 v{S+c}, v{S+c}, v{MX}")
        for c in range(3):
            a(f"v_mul_f32 v{S+c}, {hx(f2u(LOG2E))}, v{S+c}")
        for c in range(3):
            a(f"v_exp_f32 v{S+c}, v{S+c}")
        for c in range(3):
            self.dpp("v_mov_b32", Y + c, S + c, None, "quad_perm:[1,0,3,2]")
        for c in range(3):
            a(f"v_cvt_pk_bf16_f32 v{PP+c}, v{S+c}, v{Y+c}")
        a(f"v_add_f32 v{LS}, v{S}, v{S+1}\nv_add_f32 v{LS}, v{LS}, v{S+2}")
        self.row_all("v_add_f32", [LS], par)
        self.xrow_all("v_add_f32", [LS], [18])
        a("s_cmp_eq_u32 s45, 11\ns_cselect_b32 s72, 2, 4")
        a(f"s_and_b32 s73, s{S_WAVE}, 2\ns_cmp_eq_u32 s45, 11\ns_cselect_b32 s73, s73, 0")
        a(f"s_lshl_b32 s38, s{S_WAVE}, 4\ns_add_u32 s38, s38, {A_ST}\nv_and_b32 v21, 1, v0\nv_lshl_add_u32 v21, v21, 3, s38")
        a("s_lshl_b32 s39, s73, 1\nv_mov_b32 v22, s39\nv_mov_b32 v23, 1")
        a(f"s_mov_b64 exec, 3\nds_write_b64 v21, v[{MX}:{LS}]\ns_mov_b64 exec, 1\nds_add_u32 v22, v23 offset:8\ns_mov_b64 exec, -1")
        a("v_lshrrev_b32 v19, 5, v0\nv_lshlrev_b32 v19, 3, v19\nv_add_u32 v21, s38, v19")
        a(f"s_lshl_b32 s38, s{S_WAVE}, 10\ns_add_u32 s38, s38, {A_CMB}\nv_lshl_add_u32 v20, v0, 4, s38")
        for e in range(4):
            a(f"s_add_u32 s38, s73, {e}\ns_lshl_b32 s39, s38, 10\ns_add_u32 s39, s39, {A_CMB}\ns_lshl_b32 s38, s38, 4\ns_add_u32 s38, s38, {A_ST}")
            if e >= 2:
                a(f"s_cmp_eq_u32 s72, 2\ns_cselect_b32 s39, {A_ZERO}, s39\ns_cselect_b32 s38, {A_NEG}, s38")
            a(f"v_lshl_add_u32 v{24+e}, v0, 4, s39\nv_add_u32 v{28+e}, s38, v19")
        a("s_mul_i32 s38, s47, 11\ns_sub_u32 s38, s45, s38\ns_mul_i32 s39, s46, 12\ns_add_u32 s38, s38, s39")
        a(f"s_mul_i32 s74, s38, {OPSLOT}\ns_add_u32 s74, s74, {OP}")
        a("v_lshrrev_b32 v32, 5, v0\nv_lshlrev_b32 v33, 6, v32\nv_lshlrev_b32 v32, 9, v32")
        a("v_lshl_add_u32 v32, v1, 5, v32\nv_and_b32 v34, 1, v2\nv_lshl_add_u32 v32, v34, 4, v32")
        a("v_and_b32 v34, 3, v0\nv_lshl_add_u32 v33, v34, 4, v33")
        self.stamp(3)
        XS_ = (X0, 6)
        AS_ = (A0, A1)
        TS = self.opt.get("ts", 14)
        WS = 35
        self.dpp("v_mov_b32", XS_[0], PP, None, "row_newbcast:0")
        self.diag(AS_[0], XS_[0], SEL)
        for t in range(24):
            if t == TS:
                a(f"s_mov_b32 s{S_CNT}, 0")
                a.label("L_st_loop")
                a("ds_read_b32 v72, v22 offset:8")
                for e in range(4):
                    a(f"ds_read_b64 v[{74+2*e}:{75+2*e}], v{28+e}")
                a("ds_read_b32 v82, v21\ns_waitcnt lgkmcnt(0)\nv_cmp_ne_u32 vcc, s72, v72\ns_cbranch_vccnz L_st_retry")
                a.label("L_st_ok")

                def cold_st():
                    a.label("L_st_retry")
                    a(f"s_add_u32 s{S_CNT}, s{S_CNT}, 1\ns_cmp_lt_u32 s{S_CNT}, {SPIN_MAX*8}\ns_cbranch_scc1 L_st_loop\ns_branch L_st_ok")
                self.cold.append(cold_st)
                a("v_max3_f32 v84, v74, v76, v78\nv_max_f32 v84, v84, v80")
                for r in (74, 76, 78, 80, 82):
                    a(f"v_sub_f32 v{r}, v{r}, v84")
                for r in (74, 76, 78, 80, 82):
                    a(f"v_mul_f32 v{r}, {hx(f2u(LOG2E))}, v{r}")
                for r in (74, 76, 78, 80):
                    a(f"v_exp_f32 v{r}, v{r}")
                a(f"v_exp_f32 v{WS}, v82\nv_mul_f32 v85, v74, v75")
                for r in (76, 78, 80):
                    a(f"v_fmac_f32 v85, v{r}, v{r+1}")
                a("v_mov_b32 v86, v84\nv_mov_b32 v87, v85")
                self.tag4(84, vT)
                a("s_mov_b32 s78, 15\ns_mov_b32 s79, 15\ns_mov_b64 exec, s[78:79]")
                if self.fast:
                    a("s_cmp_eq_u32 s76, 1\ns_cbranch_scc0 L_st_slow")
                    a(f"buffer_store_dwordx4 v[84:87], v33, s[{SW}:{SW+3}], s74 offen offset:1024")
                    a.label("L_st_done")

                    def cold_st2():
                        a.label("L_st_slow")
                        a(f"buffer_store_dwordx4 v[84:87], v33, s[{SW}:{SW+3}], s74 offen offset:1024 sc1\ns_branch L_st_done")
                    self.cold.append(cold_st2)
                else:
                    a(f"buffer_store_dwordx4 v[84:87], v33, s[{SW}:{SW+3}], s74 offen offset:1024 sc1")
                a("s_mov_b64 exec, -1\ns_sub_u32 s72, s72, 1")
            if t + 1 < 24:
                self.dpp("v_mov_b32", XS_[(t + 1) & 1], PP + ((t + 1) >> 3), None, f"row_newbcast:{2 * ((t + 1) & 7)}")
            a(f"s_waitcnt vmcnt({after[t] + 4 + (1 if t >= TS else 0)})")
            self.mfma(O, AS_[t & 1], VR + 4 * t, t == 0)
            if t + 1 < 24:
                self.diag(AS_[(t + 1) & 1], XS_[(t + 1) & 1], SEL)
        self.stamp(4)
        for r in range(4):
            a(f"v_mul_f32 v{O+r}, v{WS}, v{O+r}")
        a(f"ds_write_b128 v20, v[{O}:{O+3}]")
        a("s_mov_b64 exec, 1\nds_add_rtn_u32 v23, v22, v23\ns_mov_b64 exec, -1")
        for e in range(4):
            a(f"ds_read_b128 v[{72+4*e}:{75+4*e}], v{24+e}")
        a("s_waitcnt lgkmcnt(4)" if not self.stamps else "s_waitcnt lgkmcnt(0)")
        a("v_readfirstlane_b32 s38, v23")
        a("s_cmp_eq_u32 s38, s72\ns_cbranch_scc0 L_att_done")
        a("s_waitcnt lgkmcnt(2)" if not self.stamps else "s_nop 0")
        a("v_pk_add_f32 v[72:73], v[72:73], v[76:77]\nv_pk_add_f32 v[74:75], v[74:75], v[78:79]")
        a("s_waitcnt lgkmcnt(0)")
        a("v_pk_add_f32 v[80:81], v[80:81], v[84:85]\nv_pk_add_f32 v[82:83], v[82:83], v[86:87]")
        a("v_pk_add_f32 v[72:73], v[72:73], v[80:81]\nv_pk_add_f32 v[74:75], v[74:75], v[82:83]")
        self.tag4(72, vT)
        if self.fast:
            a("s_cmp_eq_u32 s76, 1\ns_cbranch_scc0 L_att_slow")
            a(f"buffer_store_dwordx4 v[72:75], v32, s[{SW}:{SW+3}], s74 offen")

            def cold_o():
                a.label("L_att_slow")
                a(f"buffer_store_dwordx4 v[72:75], v32, s[{SW}:{SW+3}], s74 offen sc1\ns_branch L_att_done")
            self.cold.append(cold_o)
        else:
            a(f"buffer_store_dwordx4 v[72:75], v32, s[{SW}:{SW+3}], s74 offen sc1")
        a.label("L_att_done")
        self.stamp(5)
        a("s_waitcnt lgkmcnt(0)")
        a("s_cmp_lt_u32 s45, 18\ns_cbranch_scc0 L_att_exit")
        a("s_waitcnt vmcnt(1)\ns_branch L_s4")
        a.label("L_att_exit")
        self.dump_stamps()
        a("s_endpgm")

    def gemv32(self, BR, XR, SEL, Da, Db, A0, A1):
        self.diag(A0, XR, SEL)
        for s in range(9):
            self.diag(A1, XR + 2 * s + 1, SEL)
            self.mfma(Da, A0, BR + 4 * s, s == 0)
            if s + 1 < 9:
                self.diag(A0, XR + 2 * s + 2, SEL)
            self.mfma(Db, A1, BR + 4 * s, s == 0)

    M_W1, M_W2, M_W2T, M_XR, M_SEL, M_MSK, M_DA, M_DB, M_A0, M_A1 = 72, 108, 140, 208, 228, 232, 236, 240, 244, 248
    M_VX, M_VP, M_VS, M_B1 = 252, 253, 254, 255

    def mlpw(self):
        a = self.a
        vT = 7
        DM = self.opt.get("dm", 6)
        a.label("L_mlpw")
        a(f"s_sub_u32 s45, s{S_U}, 9\ns_sub_u32 s46, s{S_WAVE}, 4")
        a("s_cmp_eq_u32 s46, 0\ns_cbranch_scc1 L_mlpw_init")
        a("s_cmp_lt_u32 s45, 18\ns_cbranch_scc1 L_mlpw_go\ns_endpgm")
        a.label("L_mlpw_init")
        a("v_mov_b32 v3, 0\nv_mov_b32 v8, 0\nv_mov_b32 v9, 0\nv_mov_b32 v10, 0\nv_mov_b32 v11, 0\nv_lshlrev_b32 v6, 4, v0")
        a("v_mov_b32 v12, 0xff800000\nv_mov_b32 v13, 0\nv_mov_b32 v14, 0xff800000\nv_mov_b32 v15, 0")
        a(f"ds_write_b128 v3, v[8:11] offset:{A_CNT}\nds_write_b128 v3, v[12:15] offset:{A_NEG}\nds_write_b128 v6, v[8:11] offset:{A_ZERO}")
        a("s_waitcnt lgkmcnt(0)")
        if not self.opt.get('nopf'):
            self.code_prefetch(60, 6, 3)
        a("s_cmp_lt_u32 s45, 18\ns_cbranch_scc1 L_mlpw_go\ns_barrier\ns_endpgm")
        a.label("L_mlpw_go")
        a(f"s_mul_i32 s38, s46, 384\ns_add_u32 s38, s38, {A_XS}")
        a(f"v_lshl_add_u32 v{self.M_VX}, v0, 1, s38")
        a(f"v_lshl_add_u32 v3, v2, 3, s38")
        a(f"s_lshl_b32 s38, s46, 10\ns_add_u32 s38, s38, {A_F1P}\nv_lshl_add_u32 v{self.M_VP}, v0, 4, s38")
        a("v_bfe_u32 v4, v0, 2, 1\nv_lshlrev_b32 v4, 8, v4\nv_bfe_u32 v5, v0, 3, 2\nv_lshl_add_u32 v4, v5, 4, v4")
        a("v_and_b32 v5, 3, v0\nv_lshl_add_u32 v4, v5, 2, v4\nv_lshrrev_b32 v5, 5, v0\nv_lshl_add_u32 v4, v5, 11, v4")
        a(f"v_add_u32 v{self.M_VS}, {A_F1P}, v4")
        a("v_lshrrev_b32 v4, 2, v1\nv_lshl_add_u32 v4, v2, 2, v4\nv_and_b32 v5, 3, v1\nv_lshlrev_b32 v5, 4, v5")
        a("s_waitcnt lgkmcnt(0)")
        self.ws_setup()
        self.tag_setup(vT)
        self.sel_setup(self.M_SEL, 8, 9, 13)
        a(f"s_mul_i32 s47, s{S_X}, 18\ns_add_u32 s47, s47, s45")
        self.srd(SA, P_W1, 576 * 9216)
        self.srd(SB, P_W2, 4608 * 1152)
        self.srd(SC, P_B1, 9216)
        a("v_mul_u32_u24 v6, 9216, v4\nv_add_u32 v6, v6, v5")
        a(f"s_mul_i32 s70, s46, {144*9216}\ns_lshl_b32 s39, s47, 6\ns_add_u32 s70, s70, s39")
        a("v_and_b32 v8, 1, v0\nv_lshlrev_b32 v8, 4, v8\nv_mov_b32 v9, 0xffff\nv_lshlrev_b32 v8, v8, v9\nv_bfe_u32 v9, v0, 1, 2")
        for d in range(4):
            a(f"v_cmp_eq_u32 vcc, {d}, v9\nv_cndmask_b32 v{self.M_MSK+d}, 0, v8, vcc")
        a("v_and_b32 v8, 31, v0\nv_lshlrev_b32 v8, 1, v8")
        a(f"buffer_load_ushort v{self.M_B1}, v8, s[{SC}:{SC+3}], s39 offen")
        self.srd(SC, P_X, 1152)
        a("v_and_b32 v8, 1, v2\nv_lshlrev_b32 v8, 4, v8\nv_lshrrev_b32 v9, 1, v2\nv_lshl_add_u32 v8, v9, 3, v8")
        a("v_mul_u32_u24 v8, 1152, v8\nv_lshl_add_u32 v8, v1, 4, v8")
        a("v_cmp_gt_u32 vcc, 8, v1\nv_mov_b32 v9, 0x7fffffff\nv_cndmask_b32 v9, v9, v8, vcc")
        a(f"s_mul_i32 s71, s47, {32*1152}\ns_lshl_b32 s72, s46, 8\ns_add_u32 s72, s72, s71\ns_add_u32 s73, s72, 4608")
        a(f"s_lshl_b32 s77, s{S_WAVE}, 8\ns_mov_b32 s76, 2048")
        self.const_addr(77, 54, 55)
        self.const_addr(76, 70, 71)
        a("s_barrier")
        self.stamp(1)
        n = [0]

        def thr():
            if n[0] >= DM:
                a(f"s_waitcnt vmcnt({DM-1})")
            n[0] += 1
        for s in range(9):
            r = self.M_W1 + 4 * s
            thr()
            a(f"buffer_load_dwordx4 v[{r}:{r+3}], v6, s[{SA}:{SA+3}], s70 offen nt")
            if s < 8:
                a(f"s_add_u32 s70, s70, {16*9216}")
        self.const_loads(40, 54, 55, thr)
        a("s_cmp_eq_u32 s46, 0\ns_cbranch_scc0 L_mlp_w2")
        self.const_loads(56, 70, 71, thr)
        a.label("L_mlp_w2")
        for s in range(8):
            r = self.M_W2 + 4 * s
            thr()
            a(f"buffer_load_dwordx4 v[{r}:{r+3}], v8, s[{SB}:{SB+3}], {'s72' if s < 4 else 's73'} offen offset:{(s & 3) * 1152} nt")
        a("s_cmp_eq_u32 s46, 3\ns_cbranch_scc0 L_mlp_issued")
        a("s_add_u32 s72, s71, 1024\ns_add_u32 s73, s72, 4608")
        for s in range(8):
            r = self.M_W2T + 4 * s
            thr()
            a(f"buffer_load_dwordx4 v[{r}:{r+3}], v9, s[{SB}:{SB+3}], {'s72' if s < 4 else 's73'} offen offset:{(s & 3) * 1152} nt")
        a.label("L_mlp_issued")
        a("s_waitcnt vmcnt(8)")

    def stat_reduce(self, v, t, vaddrA, vaddrB):
        a = self.a
        for p in range(3):
            a(f"v_permlane32_swap_b32 v{v+2*p}, v{v+2*p+1}")
        for p in range(3):
            a(f"v_add_f32 v{v+2*p}, v{v+2*p}, v{v+2*p+1}")
        a(f"v_mov_b32 v{t}, v{v+4}\nv_permlane16_swap_b32 v{v}, v{v+2}\nv_permlane16_swap_b32 v{t}, v{v+4}")
        a(f"v_add_f32 v{v}, v{v}, v{v+2}\nv_add_f32 v{v+4}, v{v+4}, v{t}")
        self.row_all("v_add_f32", [v, v + 4])
        a("s_mov_b64 exec, s[78:79]")
        a(f"ds_write_b32 v{vaddrA}, v{v}\nds_write_b32 v{vaddrB}, v{v+4}")
        a("s_mov_b64 exec, -1")

    def s4_block(self, boff, sfx):
        a = self.a
        o = 0 if sfx == 0 else 24
        R, va = (40, 54) if sfx == 0 else (56, 70)
        XV, GA, AV, BV = 8 + o, 9 + o, 10 + o, 11 + o
        lp, rt = self.lab("cst"), self.lab("cstr")
        a(f"s_mov_b32 s{S_CNT}, 0")
        a.label(lp)
        self.clean([R, R + 4, R + 8], [], None, 4)
        a(f"s_cbranch_vccnz {rt}")
        a.label(lp + "_ok")

        def cold():
            a.label(rt)
            self.const_loads(R, va, None)
            a(f"s_add_u32 s{S_CNT}, s{S_CNT}, 1\ns_cmp_lt_u32 s{S_CNT}, {SPIN_MAX}\ns_waitcnt vmcnt(0)\ns_cbranch_scc1 {lp}\ns_branch {lp}_ok")
        self.cold.append(cold)
        for k in range(3):
            self.rscatter(R + 4 * k)
        self.rnd2(R, R + 4, 4)
        self.rnd1(R + 8)
        a(f"v_lshlrev_b32 v{XV}, 16, v{R+12}\nv_mov_b32 v{GA}, v{R}\nv_mov_b32 v{BV}, v{R+4}\nv_add_f32 v{AV}, 1.0, v{R+8}")
        self.rnd1(AV)
        a(f"v_lshlrev_b32 v{12+o}, 4, v1\nv_lshl_add_u32 v{12+o}, v2, 2, v{12+o}\nv_add_u32 v{12+o}, s{boff}, v{12+o}")
        a(f"ds_write_b32 v{12+o}, v{AV} offset:{A_AA}\nds_write_b32 v{12+o}, v{BV} offset:{A_BB}")
        a(f"s_lshr_b32 s38, s{boff}, 2\ns_add_u32 s38, s38, {A_STAT}")
        a(f"v_and_b32 v{14+o}, 1, v2\nv_lshlrev_b32 v{14+o}, 3, v{14+o}\nv_lshrrev_b32 v{15+o}, 1, v2\nv_lshlrev_b32 v{15+o}, 2, v{15+o}")
        a(f"v_add3_u32 v{14+o}, v{14+o}, v{15+o}, s38\nv_add3_u32 v{15+o}, v{15+o}, 16, s38")
        a(f"v_add_u32 v{16+o}, 32, v{14+o}\nv_add_u32 v{17+o}, 32, v{15+o}")
        E = 18 + o
        a(f"v_mov_b32 v{E}, v{AV}\nv_mul_f32 v{E+1}, v{AV}, v{AV}\nv_mul_f32 v{E+2}, v{AV}, v{BV}")
        a(f"v_mov_b32 v{E+3}, v{BV}\nv_mul_f32 v{E+4}, v{BV}, v{BV}\nv_mov_b32 v{E+5}, 0")
        self.stat_reduce(E, E + 6, 16 + o, 17 + o)
        a(f"v_mul_u32_u24 v{13+o}, 2304, v2\nv_lshl_add_u32 v{13+o}, v1, 4, v{13+o}\nv_add_u32 v{13+o}, s{boff}, v{13+o}")

    def s4_finish(self, blocks):
        a = self.a
        for G0, o in blocks:
            a(f"v_pk_add_f32 v[{G0}:{G0+1}], v[{G0}:{G0+1}], v[{G0+4}:{G0+5}]\nv_pk_add_f32 v[{G0+2}:{G0+3}], v[{G0+2}:{G0+3}], v[{G0+6}:{G0+7}]")
        for G0, o in blocks:
            self.rscatter(G0)
        for G0, o in blocks:
            XV, GA, AV, BV = 8 + o, 9 + o, 10 + o, 11 + o
            E = 18 + o
            a(f"v_fma_f32 v{E}, v{GA}, v{G0}, v{XV}")
            a(f"v_mul_f32 v{E+2}, v{AV}, v{E}\nv_mul_f32 v{E+1}, v{E}, v{E}")
            a(f"ds_write_b32 v{12+o}, v{E+2} offset:{A_U}")
            a(f"v_mul_f32 v{E+3}, v{AV}, v{E+2}\nv_mul_f32 v{E+4}, v{E+2}, v{E+2}\nv_mul_f32 v{E+5}, v{BV}, v{E+2}")
        for G0, o in blocks:
            self.stat_reduce(18 + o, 24 + o, 14 + o, 15 + o)

    def poll(self, loads, grans, words, vtb, acc, sleep=0, waits=None):
        a = self.a
        lp = self.lab("poll")
        a(f"s_mov_b32 s{S_CNT}, 0")
        a.label(lp)
        for t in loads:
            a(t)
        n = len(loads)
        self.clean(grans, words, vtb, acc, waits or [n - 1 - k for k in range(n)])
        a(f"s_cbranch_vccnz {lp}_r")
        a.label(lp + "_ok")

        def cold():
            a.label(lp + "_r")
            if sleep:
                a(f"s_sleep {sleep}")
            a(f"s_add_u32 s{S_CNT}, s{S_CNT}, 1\ns_cmp_lt_u32 s{S_CNT}, {SPIN_MAX}\ns_cbranch_scc1 {lp}\ns_branch {lp}_ok")
        self.cold.append(cold)

    def s4_and_mlp(self):
        a = self.a
        vT = 7
        a.label("L_s4")
        a("s_setprio 3")
        self.stamp(6)
        a("s_mov_b32 s78, 0x00010001\ns_mov_b32 s79, 0x00010001")
        self.s4_block(77, 0)
        a(f"s_mov_b32 s74, {AP}\ns_mov_b32 s75, {AP + 4*2304}")
        a(f"s_cmp_eq_u32 s{S_WAVE}, 4\ns_cbranch_scc1 L_s4_two")
        self.poll([f"buffer_load_dwordx4 v[56:59], v13, s[{SW}:{SW+3}], s74 offen sc1",
                   f"buffer_load_dwordx4 v[60:63], v13, s[{SW}:{SW+3}], s75 offen sc1"], [56, 60], [], None, 4)
        self.stamp(7)
        self.s4_finish([(56, 0)])
        a.label("L_s4_bar")
        a("s_waitcnt lgkmcnt(0)\ns_barrier")
        a(f"s_cmp_ge_u32 s{S_WAVE}, 4\ns_cbranch_scc0 L_att_exit")

        def cold_two():
            a.label("L_s4_two")
            self.s4_block(76, 1)
            self.poll([f"buffer_load_dwordx4 v[56:59], v13, s[{SW}:{SW+3}], s74 offen sc1",
                       f"buffer_load_dwordx4 v[60:63], v13, s[{SW}:{SW+3}], s75 offen sc1",
                       f"buffer_load_dwordx4 v[64:67], v37, s[{SW}:{SW+3}], s74 offen sc1",
                       f"buffer_load_dwordx4 v[68:71], v37, s[{SW}:{SW+3}], s75 offen sc1"], [56, 60, 64, 68], [], None, 4)
            self.stamp(7)
            self.s4_finish([(56, 0), (64, 24)])
            a("s_branch L_s4_bar")
        self.cold.insert(0, cold_two)
        self.stamp(2)
        a(f"v_lshlrev_b32 v8, 2, v0\nv_add_u32 v9, {A_STAT}, v8")
        a("s_mul_i32 s38, s46, 576\nv_add_u32 v8, s38, v8")
        a("ds_read2st64_b32 v[10:11], v9 offset0:0 offset1:1\nds_read_b32 v12, v9 offset:512")
        for k, base in enumerate((A_U, A_AA, A_BB)):
            a(f"v_add_u32 v13, {base}, v8")
            a(f"ds_read2st64_b32 v[{16+4*k}:{17+4*k}], v13 offset0:0 offset1:1\nds_read_b32 v{18+4*k}, v13 offset:512")
        a("v_cmp_gt_u32 vcc, 16, v0")
        a("s_waitcnt lgkmcnt(6)" if not self.stamps else "s_waitcnt lgkmcnt(0)")
        a("v_cndmask_b32 v12, 0, v12, vcc\nv_add_f32 v10, v10, v11\nv_add_f32 v10, v10, v12")
        self.xrow_all("v_add_f32", [10], [11])
        a(f"v_mul_f32 v10, {hx(f2u(1.0/576))}, v10")
        names = dict(m=0, e2=1, ax=2, aax=3, aaxx=4, abx=5, sa=8, saa=9, sab=10, sb=11, sbb=12)
        R = {}
        for n, (nm, k) in enumerate(names.items()):
            R[nm] = 30 + n
            self.dpp("v_mov_b32", 30 + n, 10, None, f"row_newbcast:{k}")
        m, e2, ax, aax, aaxx, abx, sa, saa, sab, sb, sbb = (R[k] for k in names)
        a(f"v_fma_f32 v{e2}, -v{m}, v{m}, v{e2}\nv_add_f32 v{e2}, {hx(f2u(1e-5))}, v{e2}\nv_rsq_f32 v{e2}, v{e2}")
        a(f"v_fma_f32 v{ax}, -v{m}, v{sa}, v{ax}")
        a(f"v_fma_f32 v{abx}, -v{m}, v{sab}, v{abx}")
        a(f"v_fma_f32 v{saa}, v{m}, v{saa}, -v{aax}\nv_sub_f32 v{saa}, v{saa}, v{aax}\nv_fma_f32 v{aaxx}, v{m}, v{saa}, v{aaxx}")
        a(f"v_fma_f32 v{ax}, v{e2}, v{ax}, v{sb}")
        a(f"v_add_f32 v{abx}, v{abx}, v{abx}\nv_fma_f32 v{aaxx}, v{e2}, v{aaxx}, v{abx}\nv_fma_f32 v{aaxx}, v{e2}, v{aaxx}, v{sbb}")
        a(f"v_fma_f32 v{aaxx}, -v{ax}, v{ax}, v{aaxx}\nv_add_f32 v{aaxx}, {hx(f2u(1e-5))}, v{aaxx}\nv_rsq_f32 v{aaxx}, v{aaxx}")
        a(f"v_mul_f32 v{e2}, v{e2}, v{aaxx}\nv_mul_f32 v{ax}, -v{ax}, v{aaxx}\nv_mul_f32 v{m}, -v{m}, v{e2}")
        a("s_waitcnt lgkmcnt(0)")
        for k in range(3):
            a(f"v_fma_f32 v{24+k}, v{aaxx}, v{24+k}, v{ax}")
        for k in range(3):
            a(f"v_fma_f32 v{24+k}, v{m}, v{20+k}, v{24+k}")
        for k in range(3):
            a(f"v_fma_f32 v{24+k}, v{e2}, v{16+k}, v{24+k}")
        a("v_cvt_pk_bf16_f32 v24, v24, v25\nv_cvt_pk_bf16_f32 v25, v26, v26")
        a(f"ds_write_b16 v{self.M_VX}, v24\nds_write_b16_d16_hi v{self.M_VX}, v24 offset:128\nds_write_b16 v{self.M_VX}, v25 offset:256")
        for s in range(9):
            a(f"ds_read_b64 v[{self.M_XR+2*s}:{self.M_XR+2*s+1}], v3 offset:{32*s}")
        a(f"v_lshlrev_b32 v{self.M_B1}, 16, v{self.M_B1}")
        a("v_lshlrev_b32 v8, 5, v1\nv_lshl_add_u32 v8, v2, 4, v8")
        a(f"s_mul_i32 s38, s47, 2304\ns_add_u32 s38, s38, {FP}\ns_lshl_b32 s39, s46, 9\ns_add_u32 s39, s39, s38")
        a("s_mov_b32 s78, 0xff00ff00\ns_mov_b32 s79, 0xff00ff00")
        a("s_waitcnt lgkmcnt(0)")
        self.stamp(3)
        Da, Db = self.M_DA, self.M_DB
        self.gemv32(self.M_W1, self.M_XR, self.M_SEL, Da, Db, self.M_A0, self.M_A1)
        for r in range(4):
            a(f"v_cndmask_b32 v{Da+r}, v{Da+r}, v{Db+r}, s[78:79]")
        a(f"ds_write_b128 v{self.M_VP}, v[{Da}:{Da+3}]")
        a("s_waitcnt lgkmcnt(0)\ns_barrier")
        self.stamp(4)
        offs = [w * 1024 + o for w in range(2) for o in (0, 576, 128, 704)]
        for k, o in enumerate(offs):
            a(f"ds_read_b32 v{16+k}, v{self.M_VS} offset:{o}")
        K1 = -2.0 * 0.7978845608028654 * LOG2E
        a(f"v_mov_b32 v12, {hx(f2u(K1))}")
        a("s_waitcnt lgkmcnt(0)")
        a("v_pk_add_f32 v[16:17], v[16:17], v[20:21]\nv_pk_add_f32 v[18:19], v[18:19], v[22:23]\nv_pk_add_f32 v[16:17], v[16:17], v[18:19]")
        a("v_add_f32 v16, v16, v17\nv_mov_b32 v10, v16\nv_permlane32_swap_b32 v10, v16")
        a(f"v_add_f32 v16, v16, v10\nv_add_f32 v16, v16, v{self.M_B1}")
        a(f"v_mul_f32 v10, v16, v16\nv_fmac_f32 v12, {hx(f2u(K1 * 0.044715))}, v10\nv_mul_f32 v12, v12, v16")
        a("v_exp_f32 v12, v12\nv_add_f32 v12, 1.0, v12\nv_rcp_f32 v12, v12\nv_mul_f32 v16, v16, v12")
        a("v_cvt_pk_bf16_f32 v16, v16, v16")
        self.dpp("v_mov_b32", 16, 16, None, "row_ror:8", rm=0xc)
        AS_ = (self.M_A0, self.M_A1)

        def prep(s):
            for d in range(4):
                self.dpp("v_and_b32", AS_[s & 1] + d, 16, self.M_MSK + d, f"row_newbcast:{s}")
        a("s_cmp_eq_u32 s46, 3\ns_cbranch_scc1 L_f2_two")
        prep(0)
        for s in range(8):
            if s + 1 < 8:
                prep(s + 1)
            self.mfma(Da, AS_[s & 1], self.M_W2 + 4 * s, s == 0)
        self.tag4(Da, vT)
        a("s_mov_b32 exec_hi, 0")
        a(f"buffer_store_dwordx4 v[{Da}:{Da+3}], v8, s[{SW}:{SW+3}], s39 offen sc1")
        self.stamp(5)
        self.dump_stamps()
        a("s_endpgm")
        a.label("L_f2_two")
        prep(0)
        for s in range(8):
            if s + 1 < 8:
                prep(s + 1)
            self.mfma(Da, AS_[s & 1], self.M_W2 + 4 * s, s == 0)
            self.mfma(Db, AS_[s & 1], self.M_W2T + 4 * s, s == 0)
        self.tag4(Da, vT)
        self.tag4(Db, vT)
        a("s_mov_b32 exec_hi, 0")
        a(f"buffer_store_dwordx4 v[{Da}:{Da+3}], v8, s[{SW}:{SW+3}], s39 offen sc1")
        a("s_mov_b32 exec_lo, 0x00ff00ff")
        a(f"buffer_store_dwordx4 v[{Db}:{Db+3}], v8, s[{SW}:{SW+3}], s38 offen offset:2048 sc1")
        self.stamp(5)
        self.dump_stamps()
        a("s_endpgm")

    def red_publish(self, D, t, red):
        a = self.a
        self.fold2(D, t)
        a("s_mov_b64 exec, s[78:79]")
        a(f"ds_write_b128 v{red}, v[{D}:{D+3}]")
        a("s_mov_b64 exec, -1\ns_waitcnt lgkmcnt(0)\ns_barrier")

    def red_final(self, vrd, R, vcol, sdst, vtb, rnd):
        a = self.a
        a(f"ds_read_b128 v[{R}:{R+3}], v{vrd}\nds_read_b128 v[{R+4}:{R+7}], v{vrd} offset:256")
        a("s_mov_b32 s38, 0xffffff00\ns_waitcnt lgkmcnt(0)")
        a(f"v_pk_add_f32 v[{R}:{R+1}], v[{R}:{R+1}], v[{R+4}:{R+5}]\nv_pk_add_f32 v[{R+2}:{R+3}], v[{R+2}:{R+3}], v[{R+6}:{R+7}]")
        self.rscatter(R)
        if rnd:
            self.rnd1(R)
            a(f"v_or_b32 v{R}, v{R}, v{vtb}")
        else:
            a(f"v_and_or_b32 v{R}, v{R}, s38, v{vtb}")
        a(f"buffer_store_dword v{R}, v{vcol}, s[{SW}:{SW+3}], s{sdst} offen sc1")

    def wcu(self):
        a = self.a
        MB, WQ, XA, XB, XR, A0, A1, D, SEL, vT, TB, HG, WO, OG, ST = 16, 88, 124, 128, 132, 152, 156, 160, 164, 168, 169, 172, 192, 224, 236
        AS_ = (A0, A1)
        DW = self.opt.get("dw", 2)

        def tile_loads():
            a("v_mul_u32_u24 v6, 6912, v3\nv_add_u32 v6, v6, v4")
            a(f"s_mul_i32 s38, s46, {144*6912}\ns_lshl_b32 s39, s45, 7\ns_add_u32 s38, s38, s39")
            for s in range(18):
                r = MB + 4 * s
                a(f"buffer_load_dwordx4 v[{r}:{r+3}], v6, s[{SA}:{SA+3}], s38 offen nt")
                if s < 17:
                    a(f"s_add_u32 s38, s38, {8*6912}")

        def tile_gemv(younger, low):
            a("v_lshlrev_b32 v14, 2, v2")
            for s in range(0, 18, 2):
                a(f"ds_read2_b32 v[{XR+s}:{XR+s+1}], v14 offset0:{4*s} offset1:{4*s+4}")
            a("s_waitcnt lgkmcnt(0)")
            self.diag(A0, XR, SEL)
            for s in range(18):
                a(f"s_waitcnt vmcnt({younger + 17 - s})")
                self.mfma(D, AS_[s & 1], MB + 4 * s, s == 0)
                if s + 1 < 18:
                    self.diag(AS_[(s + 1) & 1], XR + s + 1, SEL)
            if low:
                self.fstamp(7)
            a("v_lshlrev_b32 v13, 5, v1\nv_lshl_add_u32 v13, v2, 4, v13")
            a(f"s_mul_i32 s38, s46, {MPS}\ns_lshl_b32 s39, s45, 8\ns_add_u32 s38, s38, s39\ns_add_u32 s38, s38, {MP}")
            if low:
                a(f"s_mul_i32 s70, s46, 4608\ns_add_u32 s39, s39, s70\ns_add_u32 s39, s39, {ML}")
            self.fold2(D, A0)
            if low:
                for r in range(4):
                    a(f"v_and_b32 v{A1+r}, 0xffffff00, v{D+r}\nv_sub_f32 v{A1+r}, v{D+r}, v{A1+r}")
                self.tag4(A1, vT)
            self.tag4(D, vT)
            a("s_mov_b64 exec, s[78:79]")
            a(f"buffer_store_dwordx4 v[{D}:{D+3}], v13, s[{SW}:{SW+3}], s38 offen sc1")
            if low:
                a(f"buffer_store_dwordx4 v[{A1}:{A1+3}], v13, s[{SW}:{SW+3}], s39 offen sc1")
            a("s_mov_b64 exec, -1")

        a.label("L_w")
        self.in_w = True
        a("v_lshrrev_b32 v3, 3, v1\nv_lshl_add_u32 v3, v2, 1, v3\nv_and_b32 v4, 7, v1\nv_lshlrev_b32 v4, 4, v4")
        a(f"s_mul_i32 s45, s{S_X}, 9\ns_add_u32 s45, s45, s{S_U}\ns_and_b32 s46, s45, 3\ns_lshr_b32 s45, s45, 2")
        a(f"s_mul_i32 s69, s{S_WAVE}, {72*8192}\ns_lshl_b32 s70, s{S_X}, 10\ns_add_u32 s69, s69, s70\ns_lshl_b32 s70, s{S_U}, 7\ns_add_u32 s69, s69, s70")
        a("v_lshlrev_b32 v5, 13, v3\nv_add_u32 v5, v5, v4")
        a("s_mov_b32 s78, 0x00ff00ff\ns_mov_b32 s79, 0")
        a("s_waitcnt lgkmcnt(0)")
        self.fstamp(5)
        self.srd(SA, P_WM, 576 * 6912)
        a(f"s_cmp_eq_u32 s{S_WAVE}, 0\ns_cbranch_scc0 L_w_nom")
        self.srd(SC, P_C, 1152)
        a("s_mul_i32 s38, s46, 288\nv_lshl_add_u32 v6, v0, 1, s38")
        for k in range(3):
            a(f"buffer_load_ushort v{10+k}, v6, s[{SC}:{SC+3}], 0 offen offset:{128*k}")
        tile_loads()
        a.label("L_w_nom")
        a(f"s_cmp_eq_u32 s{S_WAVE}, 7\ns_cbranch_scc0 L_w_nox")
        self.srd(SC, P_X, 1152)
        a("v_lshlrev_b32 v6, 4, v0\nv_lshlrev_b32 v7, 2, v0")
        a(f"buffer_load_dwordx4 v[{XA}:{XA+3}], v6, s[{SC}:{SC+3}], 0 offen")
        a(f"buffer_load_dword v{XB}, v7, s[{SC}:{SC+3}], 0 offen offset:1024")
        a.label("L_w_nox")
        self.ws_setup()
        self.srd(SB, P_WQ, 576 * 8192)
        a("s_barrier")
        a(f"s_cmp_lt_u32 s{S_U}, 8\ns_cbranch_scc0 L_w_noq")
        for s in range(9):
            r = WQ + 4 * s
            a(f"buffer_load_dwordx4 v[{r}:{r+3}], v5, s[{SB}:{SB+3}], s69 offen nt")
            if s < 8:
                a(f"s_add_u32 s69, s69, {8*8192}")
        a.label("L_w_noq")
        self.stamp(1)
        self.tag_setup(vT)
        self.sel_setup(SEL, 13, 14, 15)
        self.tagbyte(TB, 2, vT)
        a("v_lshl_add_u32 v8, v1, 2, v2")
        a(f"s_lshl_b32 s38, s{S_WAVE}, 8\ns_add_u32 s38, s38, {W_RED}")
        a("v_lshlrev_b32 v240, 5, v1\nv_lshl_add_u32 v240, v2, 4, v240\nv_add_u32 v240, s38, v240")
        a(f"v_lshlrev_b32 v241, 9, v2\nv_lshl_add_u32 v241, v1, 4, v241\nv_add_u32 v241, {W_RED}, v241")
        a("v_lshlrev_b32 v242, 2, v8")
        a(f"s_cmp_eq_u32 s{S_WAVE}, 1\ns_cbranch_scc1 L_w_xi")
        a(f"s_cmp_eq_u32 s{S_WAVE}, 7\ns_cbranch_scc1 L_w_ln")
        a(f"s_cmp_eq_u32 s{S_WAVE}, 0\ns_cbranch_scc0 L_w_q")
        a("v_lshlrev_b32 v13, 1, v0")
        a(f"s_cmp_lt_u32 s{S_U}, 8\ns_cbranch_scc0 L_w_m8")
        a("s_waitcnt vmcnt(27)")
        self.fstamp(6)
        self.silu_to_lds(10, 13, XR)
        tile_gemv(9, True)
        self.stamp(2)
        a.label("L_w_q")
        a("s_waitcnt lgkmcnt(0)\ns_barrier")

        def cold_front():
            a.label("L_w_m8")
            a("s_waitcnt vmcnt(18)")
            self.silu_to_lds(10, 13, XR)
            tile_gemv(0, True)
            self.stamp(2)
            a("s_branch L_w_q")
            a.label("L_w_xi")
            a("s_getreg_b32 s38, hwreg(HW_REG_XCC_ID, 0, 4)\ns_lshl_b32 s38, s38, 8")
            a(f"v_mov_b32 v{HG}, s38\nv_mov_b32 v{HG+1}, 0\nv_mov_b32 v{HG+2}, 0\nv_mov_b32 v{HG+3}, 0")
            self.tag4(HG, vT)
            a(f"s_lshl_b32 s38, s{S_X}, 8\ns_lshl_b32 s39, s{S_U}, 4\ns_add_u32 s38, s38, s39\ns_add_u32 s38, s38, {XI}")
            a("v_mov_b32 v13, 0\ns_mov_b64 exec, 1")
            a(f"buffer_store_dwordx4 v[{HG}:{HG+3}], v13, s[{SW}:{SW+3}], s38 offen sc1")
            a("s_mov_b64 exec, -1")
            if not self.opt.get('nopf'):
                self.code_prefetch(HG + 4, 13, 3)
            a("s_branch L_w_q")
            a.label("L_w_ln")
            a(f"s_cmp_lt_u32 s{S_U}, 8\ns_cbranch_scc0 L_w_q")
            a("s_waitcnt vmcnt(9)")
            U = 16
            for k in range(5):
                src = XA + k if k < 4 else XB
                a(f"v_lshlrev_b32 v{U+2*k}, 16, v{src}\nv_and_b32 v{U+2*k+1}, 0xffff0000, v{src}")
            a(f"v_add_f32 v10, v{U}, v{U+1}\nv_mul_f32 v11, v{U}, v{U}\nv_fmac_f32 v11, v{U+1}, v{U+1}")
            for k in range(2, 10):
                a(f"v_add_f32 v10, v10, v{U+k}\nv_fmac_f32 v11, v{U+k}, v{U+k}")
            self.row_all("v_add_f32", [10, 11])
            self.xrow_all("v_add_f32", [10, 11], [12, 13])
            a(f"v_mul_f32 v10, {hx(f2u(1.0/576))}, v10\nv_mul_f32 v11, {hx(f2u(1.0/576))}, v11\nv_fma_f32 v11, -v10, v10, v11")
            self.rnd2(10, 11, 12)
            a(f"v_add_f32 v11, {hx(f2u(1e-5))}, v11")
            self.rnd1(11)
            a("v_sqrt_f32 v11, v11")
            self.rnd1(11)
            a("v_rcp_f32 v11, v11")
            for k in range(10):
                a(f"v_sub_f32 v{U+k}, v{U+k}, v10")
            for k in range(0, 10, 2):
                self.rnd2(U + k, U + k + 1, 12)
            for k in range(10):
                a(f"v_mul_f32 v{U+k}, v{U+k}, v11")
            for k in range(0, 10, 2):
                self.rnd2(U + k, U + k + 1, 12)
            a(f"v_lshlrev_b32 v12, 5, v0\nv_lshlrev_b32 v13, 3, v0")
            a(f"ds_write_b128 v12, v[{U}:{U+3}] offset:{W_NX}\nds_write_b128 v12, v[{U+4}:{U+7}] offset:{W_NX+16}")
            a(f"ds_write_b64 v13, v[{U+8}:{U+9}] offset:{W_NX+2048}")
            a("s_branch L_w_q")
        self.cold.append(cold_front)

        a(f"s_cmp_lt_u32 s{S_U}, 8\ns_cbranch_scc0 L_w_wo")
        a(f"s_mul_i32 s38, s{S_WAVE}, 288\ns_add_u32 s70, s38, {MP}\ns_add_u32 s71, s38, {ML}\ns_add_u32 s38, s38, {W_NX}")
        a(f"v_mul_u32_u24 v12, {MPS}, v2\nv_lshl_add_u32 v12, v1, 4, v12\nv_mul_u32_u24 v13, 4608, v2\nv_lshl_add_u32 v13, v1, 4, v13")
        a("v_and_b32 v14, 1, v1\nv_lshlrev_b32 v14, 4, v14\nv_bfe_u32 v15, v1, 1, 1\nv_mul_u32_u24 v15, 2304, v15\nv_add3_u32 v14, v14, v15, 64")
        a(f"v_add_u32 v14, 192, v14\nv_mul_u32_u24 v15, {MPS}, v2\nv_mul_u32_u24 v10, 4608, v2\nv_add_u32 v10, {ML-MP}, v10")
        a("v_and_b32 v11, 4, v1\nv_cmp_ne_u32 vcc, 0, v11\nv_cndmask_b32 v15, v15, v10, vcc\nv_add_u32 v14, v14, v15")
        a("v_and_b32 v9, 1, v1\nv_lshl_add_u32 v9, v9, 2, v2\nv_lshl_add_u32 v9, v9, 2, s38\nv_add_u32 v10, s38, v242")
        self.fstamp(8)
        if self.opt.get("front"):
            a("s_waitcnt vmcnt(0)")
        self.fstamp(9)
        a("ds_read_b32 v10, v10\nds_read_b32 v11, v9 offset:256")
        self.poll([f"buffer_load_dwordx4 v[{HG}:{HG+3}], v12, s[{SW}:{SW+3}], s70 offen sc1",
                   f"buffer_load_dwordx4 v[{HG+4}:{HG+7}], v12, s[{SW}:{SW+3}], s70 offen offset:2304 sc1",
                   f"buffer_load_dwordx4 v[{HG+8}:{HG+11}], v13, s[{SW}:{SW+3}], s71 offen sc1",
                   f"buffer_load_dwordx4 v[{HG+12}:{HG+15}], v13, s[{SW}:{SW+3}], s71 offen offset:2304 sc1",
                   f"buffer_load_dwordx4 v[{HG+16}:{HG+19}], v14, s[{SW}:{SW+3}], s70 offen sc1"],
                  [HG + 4 * k for k in range(5)], [], None, 15, sleep=self.opt.get("hsleep", 3))
        self.stamp(3)
        for r in range(8):
            a(f"v_add_f32 v{HG+r}, v{HG+r}, v{HG+8+r}")
        for r in range(4):
            self.dpp("v_add_f32", HG + 16 + r, HG + 16 + r, HG + 16 + r, "row_ror:12")
        for k in (0, 4, 16):
            self.rscatter(HG + k)
        sA, cA, sB, cB = HG, HG + 4, HG + 16, HG + 17
        self.dpp("v_mov_b32", cB, sB, None, "row_ror:14")
        self.rnd2(sA, sB, 14)
        self.rnd2(cA, cB, 14)
        a(f"v_add_f32 v{cA}, 1.0, v{cA}\nv_add_f32 v{cB}, 1.0, v{cB}")
        self.rnd2(cA, cB, 14)
        a("s_waitcnt lgkmcnt(0)")
        a(f"v_mul_f32 v{cA}, v{cA}, v10\nv_mul_f32 v{cB}, v{cB}, v11")
        self.rnd2(cA, cB, 14)
        a(f"v_add_f32 v{cA}, v{cA}, v{sA}\nv_add_f32 v{cB}, v{cB}, v{sB}\nv_cvt_pk_bf16_f32 v14, v{cA}, v{cB}")
        a(f"s_lshl_b32 s38, s{S_WAVE}, 8\ns_add_u32 s38, s38, {W_HS}")
        a("v_lshl_add_u32 v12, v8, 1, s38\nv_lshl_add_u32 v13, v2, 2, s38")
        a("ds_write_b16 v12, v14\nds_write_b16_d16_hi v12, v14 offset:128")
        for s in range(0, 8, 2):
            a(f"ds_read2_b32 v[{XR+s}:{XR+s+1}], v13 offset0:{4*s} offset1:{4*s+4}")
        a(f"ds_read_b32 v{XR+8}, v13 offset:128")
        a("s_waitcnt lgkmcnt(0)")
        self.diag(A0, XR, SEL)
        for s in range(9):
            self.mfma(D, AS_[s & 1], WQ + 4 * s, s == 0)
            if s + 1 < 9:
                self.diag(AS_[(s + 1) & 1], XR + s + 1, SEL)
        self.red_publish(D, A0, 240)
        a(f"s_cmp_eq_u32 s{S_WAVE}, 0\ns_cbranch_scc0 L_w_wo")
        a(f"s_lshl_b32 s69, s{S_X}, 11\ns_lshl_b32 s39, s{S_U}, 8\ns_add_u32 s69, s69, s39\ns_add_u32 s69, s69, {QB}")
        self.red_final(241, 16, 242, 69, TB, True)
        self.stamp(4)
        a.label("L_w_wo")
        a(f"s_sub_u32 s38, s{S_WAVE}, 1\ns_cmp_lt_u32 s38, 2\ns_cbranch_scc1 L_w_m2")
        a.label("L_w_wo2")

        def cold_m2():
            a.label("L_w_m2")
            a(f"s_mul_i32 s38, s{S_WAVE}, 18\ns_add_u32 s45, s45, s38")
            tile_loads()
            tile_gemv(0, False)
            self.stamp(2)
            a("s_branch L_w_wo2")
        self.cold.append(cold_m2)
        self.srd(SA, P_WO, 4096 * 1152)
        a(f"v_mul_u32_u24 v5, 1152, v2\nv_bfe_u32 v6, v0, 3, 1\nv_mul_u32_u24 v6, {32*1152}, v6\nv_add3_u32 v5, v5, v6, v4")
        a(f"s_lshl_b32 s38, s{S_X}, 9\ns_lshl_b32 s39, s{S_WAVE}, 6\ns_add_u32 s38, s38, s39\ns_mul_i32 s38, s38, 1152")
        a(f"s_lshl_b32 s39, s{S_U}, 7\ns_add_u32 s38, s38, s39")
        for s in range(8):
            r = WO + 4 * s
            if s >= DW:
                a(f"s_waitcnt vmcnt({DW-1})")
            a(f"buffer_load_dwordx4 v[{r}:{r+3}], v5, s[{SA}:{SA+3}], s38 offen nt")
            if s < 7:
                a(f"s_add_u32 s38, s38, {4*1152}")
        a(f"s_lshr_b32 s38, s{S_WAVE}, 2\ns_lshl_b32 s39, s{S_X}, 1\ns_add_u32 s38, s38, s39\ns_mul_i32 s38, s38, {12*OPSLOT}")
        a(f"s_add_u32 s38, s38, {OP}\ns_and_b32 s39, s{S_WAVE}, 3\ns_lshl_b32 s70, s39, 8\ns_add_u32 s70, s70, s38")
        a("s_lshr_b32 s39, s39, 1\ns_lshl_b32 s39, s39, 6\ns_add_u32 s71, s38, s39\ns_add_u32 s71, s71, 1024")
        a(f"s_add_u32 s72, s70, {4*OPSLOT}\ns_add_u32 s73, s70, {8*OPSLOT}")
        a(f"v_mul_u32_u24 v10, {OPSLOT}, v2\nv_min_u32 v11, 2, v1\nv_mul_u32_u24 v11, {4*OPSLOT}, v11\nv_add_u32 v11, v11, v10\nv_lshl_add_u32 v10, v1, 4, v10")
        a("v_and_b32 v12, 3, v0")
        self.tagbyte(13, 12, vT)
        a(f"v_add_u32 v240, {W_RED2-W_RED}, v240\nv_add_u32 v241, {W_RED2-W_RED}, v241")
        a(f"s_mul_i32 s69, s{S_X}, 2304\ns_lshl_b32 s39, s{S_U}, 8\ns_add_u32 s69, s69, s39\ns_add_u32 s69, s69, {AP}")
        a("s_mov_b32 s76, 0x00070007\ns_mov_b32 s77, 0x00070007")
        self.stamp(5)
        self.poll([f"buffer_load_dwordx4 v[{ST}:{ST+3}], v11, s[{SW}:{SW+3}], s71 offen sc1"], [ST], [], None, 14, sleep=2)
        quad = ("quad_perm:[1,0,3,2]", "quad_perm:[2,3,0,1]")
        a(f"v_mov_b32 v14, v{ST}")
        self.row_all("v_max_f32", [14], quad)
        self.xrow_all("v_max_f32", [14], [15])
        a(f"v_sub_f32 v{ST}, v{ST}, v14\nv_mul_f32 v{ST}, {hx(f2u(LOG2E))}, v{ST}\nv_exp_f32 v{ST}, v{ST}")
        a(f"v_cndmask_b32 v{ST}, 0, v{ST}, s[76:77]\nv_mul_f32 v{ST+1}, v{ST}, v{ST+1}")
        self.row_all("v_add_f32", [ST + 1], quad)
        self.xrow_all("v_add_f32", [ST + 1], [15])
        a(f"v_rcp_f32 v{ST+1}, v{ST+1}\nv_mul_f32 v{ST}, v{ST}, v{ST+1}")
        for t in range(3):
            self.dpp("v_mov_b32", ST + 1 + t, ST, None, f"row_newbcast:{t}")
        self.poll([f"buffer_load_dwordx4 v[{OG+4*t}:{OG+4*t+3}], v10, s[{SW}:{SW+3}], s{(70, 72, 73)[t]} offen sc1" for t in range(3)],
                  [OG, OG + 4, OG + 8], [], None, 14)
        self.stamp(6)
        for r in range(4):
            a(f"v_mul_f32 v{OG+r}, v{ST+1}, v{OG+r}")
        for t in (1, 2):
            for r in range(4):
                a(f"v_fmac_f32 v{OG+r}, v{ST+1+t}, v{OG+4*t+r}")
        self.rscatter(OG)
        self.dpp("v_mov_b32", 15, OG, None, "row_ror:8")
        a(f"v_cvt_pk_bf16_f32 v14, v{OG}, v15")
        XS_ = (16, 17)
        self.dpp("v_mov_b32", 16, 14, None, "row_newbcast:0")
        self.diag(A0, 16, SEL)
        for s in range(8):
            if s + 1 < 8:
                self.dpp("v_mov_b32", XS_[(s + 1) & 1], 14, None, f"row_newbcast:{s+1}")
            self.mfma(D, AS_[s & 1], WO + 4 * s, s == 0)
            if s + 1 < 8:
                self.diag(AS_[(s + 1) & 1], XS_[(s + 1) & 1], SEL)
        self.red_publish(D, A0, 240)
        a(f"s_cmp_eq_u32 s{S_WAVE}, 0\ns_cbranch_scc0 L_w_fin")
        self.red_final(241, 16, 242, 69, TB, False)
        self.stamp(7)
        a.label("L_w_fin")
        a(f"s_cmp_ge_u32 s{S_WAVE}, 6\ns_cbranch_scc1 L_w_exit")
        a(f"s_lshl_b32 s70, s{S_U}, 8\ns_lshl_b32 s39, s{S_X}, 5\ns_add_u32 s70, s70, s39")
        a("v_and_b32 v10, 7, v0\nv_lshlrev_b32 v10, 2, v10\nv_lshrrev_b32 v11, 3, v0\nv_mul_u32_u24 v11, 2304, v11\nv_add_u32 v11, v11, v10")
        self.srd(SC, P_OUT, 1152)
        a("s_lshr_b32 s71, s70, 1\nv_lshrrev_b32 v12, 1, v10")
        a(f"s_cmp_eq_u32 s{S_WAVE}, 0\ns_cbranch_scc0 L_w_fin3")
        self.srd(SA, P_X, 1152)
        self.srd(SB, P_B2, 1152)
        a(f"buffer_load_ushort v20, v12, s[{SA}:{SA+3}], s71 offen\nbuffer_load_ushort v21, v12, s[{SB}:{SB+3}], s71 offen")
        a(f"buffer_load_ushort v25, v12, s[{SC}:{SC+3}], s71 offen")
        a(f"v_bfe_u32 v26, v0, 3, 2\nv_mul_u32_u24 v26, {MPS}, v26\nv_lshrrev_b32 v27, 5, v0\nv_mul_u32_u24 v27, 6912, v27\nv_add3_u32 v26, v26, v27, v10")
        a(f"s_add_u32 s72, s70, {MP+4608}\ns_add_u32 s74, s70, {AP}")
        self.poll([f"buffer_load_dword v22, v26, s[{SW}:{SW+3}], s72 offen sc1",
                   f"buffer_load_dword v24, v11, s[{SW}:{SW+3}], s74 offen sc1"], [], [22, 24], 13, 27, sleep=1)
        self.dpp("v_add_f32", 22, 22, 22, "row_ror:8")
        self.dpp("v_add_f32", 24, 24, 24, "row_ror:8")
        a("v_mov_b32 v26, v22\nv_mov_b32 v27, v24\nv_permlane16_swap_b32 v26, v22\nv_permlane16_swap_b32 v27, v24")
        a("v_add_f32 v22, v22, v26\nv_add_f32 v24, v24, v27\nv_mov_b32 v27, v24\nv_permlane32_swap_b32 v22, v23\nv_permlane32_swap_b32 v27, v24")
        a("v_add_f32 v24, v24, v27\nv_lshlrev_b32 v20, 16, v20\nv_lshlrev_b32 v21, 16, v21")
        self.rnd2(22, 23, 26)
        self.rnd1(24)
        a("v_mul_f32 v24, v24, v22")
        self.rnd1(24)
        a("v_add_f32 v24, v24, v20")
        self.rnd1(24)
        a.label("L_w_fin3")
        a(f"s_mul_i32 s72, s{S_WAVE}, {24*2304}\ns_add_u32 s72, s72, s70\ns_add_u32 s72, s72, {FP}")
        a(f"s_add_u32 s73, s72, {8*2304}\ns_add_u32 s74, s72, {16*2304}")
        a(f"s_lshl_b32 s38, s{S_WAVE}, 5\ns_add_u32 s38, s38, {W_FIN}\nv_add_u32 v14, s38, v10\nv_add_u32 v15, {W_FIN}, v10")
        self.stamp(8)
        self.poll([f"buffer_load_dword v{16+k}, v11, s[{SW}:{SW+3}], s{72+k} offen sc1" for k in range(3)], [], [16, 17, 18], 13, 19)
        a("v_add_f32 v16, v16, v17\nv_add_f32 v16, v16, v18")
        self.dpp("v_add_f32", 16, 16, 16, "row_ror:8")
        self.xrow_all("v_add_f32", [16], [17])
        a("s_mov_b64 exec, 0xff\nds_write_b32 v14, v16\ns_waitcnt lgkmcnt(0)\ns_barrier")
        a(f"s_cmp_eq_u32 s{S_WAVE}, 0\ns_cbranch_scc0 L_w_exit")
        for k in range(3):
            a(f"ds_read2_b32 v[{26+2*k}:{27+2*k}], v15 offset0:{16*k} offset1:{16*k+8}")
        a("s_waitcnt lgkmcnt(0)")
        a("v_add_f32 v26, v26, v27\nv_add_f32 v28, v28, v29\nv_add_f32 v30, v30, v31\nv_add_f32 v26, v26, v28\nv_add_f32 v26, v26, v30")
        self.rnd1(26)
        a("v_add_f32 v26, v26, v21")
        self.rnd1(26)
        a("v_mul_f32 v26, v26, v23")
        self.rnd1(26)
        a("v_add_f32 v26, v26, v24\nv_cvt_pk_bf16_f32 v26, v26, v26")
        a(f"buffer_store_short v26, v12, s[{SC}:{SC+3}], s71 offen")
        a("s_cmp_eq_u32 s2, 0\ns_cbranch_scc0 L_w_exit")
        a(f"s_mov_b64 exec, 1\nv_mov_b32 v27, 0\nbuffer_store_dword v{vT}, v27, s[{SW}:{SW+3}], 0 offen offset:{EP}")
        a.label("L_w_exit")
        a("s_mov_b64 exec, -1")
        self.stamp(9)
        self.dump_stamps()
        a("s_endpgm")


HEAD = f"""; fused adaLN-conditioned decode block: one persistent launch, 256 workgroups (one per CU), hand-offs through d_ws
; @launch grid=(256,1,1) block=(512,1,1) lds={LDS_BYTES}
.amdgcn_target "amdgcn-amd-amdhsa--gfx950"
.text
.globl {NAME}_kernel
.p2align 8
.type {NAME}_kernel,@function
"""
TAIL = f""".section .rodata,"a"
.p2align 6
.amdhsa_kernel {NAME}_kernel
  .amdhsa_next_free_vgpr 256
  .amdhsa_next_free_sgpr 102
  .amdhsa_accum_offset 256
  .amdhsa_group_segment_fixed_size 0
  .amdhsa_kernarg_size 120
  .amdhsa_user_sgpr_count 2
  .amdhsa_user_sgpr_kernarg_segment_ptr 1
  .amdhsa_system_sgpr_workgroup_id_x 1
  .amdhsa_float_denorm_mode_32 3
.end_amdhsa_kernel
"""


def generate(stamps=False, fast=True, opt=None):
    g = G(stamps, fast, opt)
    body = g.build()
    opt = opt or {}
    L = []
    for ln in body.split("\n"):
        t = ln.strip()
        if t.startswith("buffer_load") and not t.endswith(" nt"):
            if t.endswith("sc1"):
                if opt.get("ntpoll"):
                    ln += " nt"
            elif opt.get("ntsmall"):
                ln += " nt"
        if t.startswith("global_load") and opt.get("ntsmall"):
            ln += " nt"
        if t.startswith("buffer_store") and t.endswith("sc1") and opt.get("ntstore"):
            ln += " nt"
        L.append(ln)
    return HEAD + "\n".join(L) + TAIL


if __name__ == "__main__":
    out = sys.argv[1]
    stamps = "stamps" in sys.argv[2:]
    fast = "nofast" not in sys.argv[2:]
    opt = {}
    for arg in sys.argv[2:]:
        if "=" in arg:
            k, v = arg.split("=")
            opt[k] = int(v) if v.lstrip("-").isdigit() else v
    open(out, "w").write(generate(stamps, fast, opt))
```

```python
import sys, struct, os
sys.path.insert(0, os.path.dirname(os.path.abspath(__file__)))
from asmlib import Asm

NAME = "adaLN_cond__sliding_block_cached__mixer_channel_mlp__decode"


def f2u(x):
    return struct.unpack("<I", struct.pack("<f", x))[0]


def hx(x):
    return "0x%08x" % (x & 0xffffffff)


LOG2E = 1.4426950408889634
EP, XI, MP, ML, QB, AP, OP, FP, QP, STAMP = 0, 933888, 4096, 59392, 77824, 94208, 112640, 333824, 665600, 1 << 20
EX = 950272
MPS = 3456 * 4
OPSLOT = 1152
A_FLAG, A_GO, A_MG, A_PUB = 96, 104, 108, 112
A_CNT, A_NEG, A_ST, A_QL, A_CMB, A_XS, A_F1P, A_U, A_AA, A_BB, A_STAT, A_ZERO = 0, 16, 32, 128, 2176, 6272, 7808, 11904, 14208, 16512, 18816, 19712
W_XS, W_HS, W_RED2, W_FIN, W_HF, W_XF, W_GO, W_QS = 0, 512, 1024, 3072, 3328, 3332, 3336, 3340
LDS_BYTES = 19712 + 1024
SPIN_MAX = 40000

P_X, P_K, P_V, P_WQ, P_WO, P_W1, P_B1, P_W2, P_B2, P_C, P_WM, P_OUT, P_WS = 8, 10, 12, 14, 16, 20, 22, 24, 26, 28, 30, 32, 36
S_WAVE, S_X, S_U, S_T, S_SELA = 40, 41, 42, 43, 44
SA, SB, SC, SW = 48, 52, 56, 60
S_TB = 92
S_BAD = 66
S_CNT = 68


def STB(k):
    return (80, 82, 84, 86, 88, 90, 96, 98, 100, 64)[k]


class G:
    def __init__(self, stamps=False, fast=True, opt=None):
        self.a = Asm()
        self.stamps = stamps
        self.fast = fast
        self.opt = opt or {}
        self.nlab = 0
        self.cold = []
        self.in_w = False

    def lab(self, base):
        self.nlab += 1
        return f"L_{base}_{self.nlab}"

    def srd(self, d, p, size, add=None):
        a = self.a
        if add is None:
            a(f"s_mov_b32 s{d}, s{p}\ns_mov_b32 s{d+1}, s{p+1}")
        else:
            a(f"s_add_u32 s{d}, s{p}, {add}\ns_addc_u32 s{d+1}, s{p+1}, 0")
        a(f"s_mov_b32 s{d+2}, {size}\ns_mov_b32 s{d+3}, 0x20000")

    def fstamp(self, k):
        if self.stamps and self.opt.get("front"):
            self.a(f"s_memrealtime s[{STB(k)}:{STB(k)+1}]")

    def stamp(self, k):
        if self.stamps and not (self.opt.get("front") and k >= 5 and self.in_w):
            self.a(f"s_memrealtime s[{STB(k)}:{STB(k)+1}]")

    def dump_stamps(self):
        if not self.stamps:
            return
        a = self.a
        a("s_waitcnt lgkmcnt(0)")
        a(f"s_lshl_b32 s38, s2, 3\ns_add_u32 s38, s38, s{S_WAVE}\ns_lshl_b32 s38, s38, 6\ns_add_u32 s38, s38, {STAMP}")
        a("s_mov_b64 exec, 1\nv_mov_b32 v2, 0")
        for k in range(10):
            a(f"v_mov_b32 v3, s{STB(k)}")
            a(f"buffer_store_dword v3, v2, s[{SW}:{SW+3}], s38 offen offset:{4*k}")
        a("s_getreg_b32 s39, hwreg(HW_REG_XCC_ID)\nv_mov_b32 v3, s39")
        a(f"buffer_store_dword v3, v2, s[{SW}:{SW+3}], s38 offen offset:40")
        a(f"v_mov_b32 v3, s76\nbuffer_store_dword v3, v2, s[{SW}:{SW+3}], s38 offen offset:44")

    def tag_setup(self, vT):
        a = self.a
        a("s_waitcnt lgkmcnt(0)")
        a(f"s_add_u32 s{S_T}, s{S_T}, 0x01010101")
        for k in range(4):
            a(f"s_mov_b32 s{4+k}, {hx(0x07060500 + k)}")
            a(f"s_bfe_u32 s{S_TB+k}, s{S_T}, {hex(0x80000 + 8 * k)}")
        a(f"v_mov_b32 v{vT}, s{S_T}")

    def tag4(self, d, vT):
        for k in range(4):
            self.a(f"v_perm_b32 v{d+k}, v{d+k}, v{vT}, s{4+k}")

    def tagbyte(self, vd, vsel, vT):
        a = self.a
        a(f"v_lshlrev_b32 v{vd}, 3, v{vsel}\nv_lshrrev_b32 v{vd}, v{vd}, v{vT}\nv_and_b32 v{vd}, 0xff, v{vd}")

    def clean(self, grans, words, vtb, acc, waits=None):
        a = self.a
        regs = []
        pend = []
        first = True

        def fold():
            nonlocal first
            while len(pend) >= (3 if first else 2):
                if first:
                    a(f"v_or3_b32 v{acc}, v{pend[0]}, v{pend[1]}, v{pend[2]}")
                    del pend[:3]
                    first = False
                else:
                    a(f"v_or3_b32 v{acc}, v{acc}, v{pend[0]}, v{pend[1]}")
                    del pend[:2]
        n = 0
        for d in grans:
            if waits:
                a(f"s_waitcnt vmcnt({waits[n]})")
            n += 1
            for k in range(4):
                a(f"v_xor_b32 v{d+k}, s{S_TB+k}, v{d+k}")
                pend.append(d + k)
            fold()
        for d in words:
            if waits:
                a(f"s_waitcnt vmcnt({waits[n]})")
            n += 1
            a(f"v_xor_b32 v{d}, v{vtb}, v{d}")
            pend.append(d)
            fold()
        if first:
            assert len(pend) == 2
            a(f"v_or_b32 v{acc}, v{pend[0]}, v{pend[1]}")
            pend = []
        for r in pend:
            a(f"v_or_b32 v{acc}, v{acc}, v{r}")
        a(f"v_and_b32 v{acc}, 0xff, v{acc}")
        a(f"v_cmp_ne_u32 vcc, 0, v{acc}")

    def sel_setup(self, sel, t0, t1, t2):
        a = self.a
        a(f"v_bfe_u32 v{t0}, v0, 3, 1")
        a(f"v_mul_u32_u24 v{t0}, 0x202, v{t0}\nv_add_u32 v{t0}, 0x100, v{t0}")
        a(f"v_and_b32 v{t1}, 1, v0\nv_lshlrev_b32 v{t1}, 4, v{t1}")
        a(f"v_lshlrev_b32 v{t0}, v{t1}, v{t0}")
        a(f"v_mov_b32 v{t2}, 0x0c0c0000\nv_lshrrev_b32 v{t1}, v{t1}, v{t2}\nv_or_b32 v{t0}, v{t0}, v{t1}")
        a(f"v_bfe_u32 v{t1}, v0, 1, 2\nv_mov_b32 v{t2}, 0x0c0c0c0c")
        for d in range(4):
            a(f"v_cmp_eq_u32 vcc, {d}, v{t1}\nv_cndmask_b32 v{sel+d}, v{t2}, v{t0}, vcc")

    def diag(self, A, x, sel):
        for d in range(4):
            self.a(f"v_perm_b32 v{A+d}, v{x}, v{x}, v{sel+d}")

    def mfma(self, D, A, B, first):
        c = "0" if first else f"v[{D}:{D+3}]"
        self.a(f"v_mfma_f32_16x16x32_bf16 v[{D}:{D+3}], v[{A}:{A+3}], v[{B}:{B+3}], {c}")

    def dpp(self, op, d, s0, s1, ctl, rm=0xf, bm=0xf):
        if s1 is None:
            self.a(f"{op}_dpp v{d}, v{s0} {ctl} row_mask:{hex(rm)} bank_mask:{hex(bm)}")
        else:
            self.a(f"{op}_dpp v{d}, v{s0}, v{s1} {ctl} row_mask:{hex(rm)} bank_mask:{hex(bm)}")

    def xrow_all(self, op, regs, tmps):
        a = self.a
        for sw in ("v_permlane16_swap_b32", "v_permlane32_swap_b32"):
            for r, t in zip(regs, tmps):
                a(f"v_mov_b32 v{t}, v{r}")
            for r, t in zip(regs, tmps):
                a(f"{sw} v{t}, v{r}")
            for r, t in zip(regs, tmps):
                a(f"{op} v{r}, v{r}, v{t}")

    def row_all(self, op, regs, steps=("quad_perm:[1,0,3,2]", "quad_perm:[2,3,0,1]", "row_half_mirror", "row_mirror")):
        for st in steps:
            for r in regs:
                self.dpp(op, r, r, r, st)

    def rscatter(self, c):
        a = self.a
        a(f"v_permlane32_swap_b32 v{c}, v{c+2}\nv_permlane32_swap_b32 v{c+1}, v{c+3}")
        a(f"v_add_f32 v{c}, v{c}, v{c+2}\nv_add_f32 v{c+1}, v{c+1}, v{c+3}")
        a(f"v_permlane16_swap_b32 v{c}, v{c+1}\nv_add_f32 v{c}, v{c}, v{c+1}")

    def rscatter2(self, g0, g1):
        a = self.a
        for c in (g0, g1):
            a(f"v_permlane32_swap_b32 v{c}, v{c+2}\nv_permlane32_swap_b32 v{c+1}, v{c+3}")
        for c in (g0, g1):
            a(f"v_add_f32 v{c}, v{c}, v{c+2}\nv_add_f32 v{c+1}, v{c+1}, v{c+3}")
        for c in (g0, g1):
            a(f"v_permlane16_swap_b32 v{c}, v{c+1}")
        for c in (g0, g1):
            a(f"v_add_f32 v{c}, v{c}, v{c+1}")

    def fold2(self, D, t):
        a = self.a
        for r in range(4):
            a(f"v_permlane32_swap_b32 v{D+r}, v{t+r}")
        for r in range(4):
            self.dpp("v_add_f32", D + r, t + r, D + r, "row_ror:8")

    def rnd2(self, x, y, t):
        a = self.a
        a(f"v_cvt_pk_bf16_f32 v{t}, v{x}, v{y}\nv_lshlrev_b32 v{x}, 16, v{t}\nv_and_b32 v{y}, 0xffff0000, v{t}")

    def rnd1(self, x):
        a = self.a
        a(f"v_cvt_pk_bf16_f32 v{x}, v{x}, v{x}\nv_and_b32 v{x}, 0xffff0000, v{x}")

    def silu_to_lds(self, c, vaddr, t):
        a = self.a
        for k in range(3):
            a(f"v_lshlrev_b32 v{c+k}, 16, v{c+k}")
        for k in range(3):
            a(f"v_mul_f32 v{t+k}, {hx(f2u(-LOG2E))}, v{c+k}")
        for k in range(3):
            a(f"v_exp_f32 v{t+k}, v{t+k}")
        for k in range(3):
            a(f"v_add_f32 v{t+k}, 1.0, v{t+k}")
        for k in range(3):
            a(f"v_rcp_f32 v{t+k}, v{t+k}")
        for k in range(3):
            a(f"v_mul_f32 v{c+k}, v{c+k}, v{t+k}")
        a(f"v_cvt_pk_bf16_f32 v{t}, v{c}, v{c+1}\nv_cvt_pk_bf16_f32 v{t+1}, v{c+2}, v{c+2}")
        a(f"ds_write_b16 v{vaddr}, v{t}\nds_write_b16_d16_hi v{vaddr}, v{t} offset:128\nds_write_b16 v{vaddr}, v{t+1} offset:256")

    def code_prefetch(self, vd, vt, n):
        a = self.a
        a("s_getpc_b64 s[38:39]")
        lab = self.lab("pc")
        a.label(lab)
        a(f"s_sub_u32 s38, s38, {lab}-{NAME}_kernel\ns_subb_u32 s39, s39, 0")
        a(f"v_lshlrev_b32 v{vt}, 7, v0")
        for k in range(n):
            if k + 1 == n:
                a(f"v_min_u32 v{vt}, L_end-{NAME}_kernel, v{vt}")
            a(f"global_load_dword v{vd+k}, v{vt}, s[38:39]")
            if k + 1 < n:
                a(f"v_add_u32 v{vt}, 8192, v{vt}")

    def build(self):
        a = self.a
        a.raw(f"{NAME}_kernel:")
        self.stamp(0)
        if self.opt.get("pin"):
            a("s_memrealtime s[100:101]")
        a("s_cmp_ge_u32 s2, 256\ns_cbranch_scc1 L_end")
        a("s_load_dwordx16 s[8:23], s[0:1], 0\ns_load_dwordx8 s[24:31], s[0:1], 64")
        a("s_load_dwordx4 s[32:35], s[0:1], 96\ns_load_dwordx2 s[36:37], s[0:1], 112")
        a(f"v_lshrrev_b32 v1, 6, v0\nv_and_b32 v0, 63, v0\nv_readfirstlane_b32 s{S_WAVE}, v1")
        a(f"s_and_b32 s{S_X}, s2, 7\ns_lshr_b32 s{S_U}, s2, 3")
        a("v_and_b32 v1, 15, v0\nv_lshrrev_b32 v2, 4, v0")
        a(f"s_cmp_lt_u32 s{S_U}, 9\ns_cbranch_scc1 L_w")
        a(f"s_cmp_ge_u32 s{S_WAVE}, 4\ns_cbranch_scc1 L_mlpw")
        self.att()
        self.mlpw()
        self.s4_and_mlp()
        self.wcu()
        k = 0
        while k < len(self.cold):
            self.cold[k]()
            k += 1
        a.label("L_end")
        a("s_endpgm")
        return a.text()

    def ws_setup(self):
        a = self.a
        a(f"s_load_dword s{S_T}, s[{P_WS}:{P_WS+1}], {EP}")
        self.srd(SW, P_WS, 2 << 20)

    def const_addr(self, boff, va, vx):
        a = self.a
        a(f"v_mul_u32_u24 v{va}, {MPS}, v2\nv_lshl_add_u32 v{va}, v1, 4, v{va}\nv_add_u32 v{va}, s{boff}, v{va}")
        a(f"v_lshlrev_b32 v{vx}, 3, v1\nv_lshl_add_u32 v{vx}, v2, 1, v{vx}\ns_lshr_b32 s38, s{boff}, 1\nv_add_u32 v{vx}, s38, v{vx}")

    def const_loads(self, R, va, vx, pre=None):
        a = self.a
        a(f"s_mov_b32 s38, {MP+4608}\ns_mov_b32 s39, {MP+9216}")
        L = [f"buffer_load_dwordx4 v[{R}:{R+3}], v{va}, s[{SW}:{SW+3}], s38 offen sc1",
             f"buffer_load_dwordx4 v[{R+4}:{R+7}], v{va}, s[{SW}:{SW+3}], s38 offen offset:2304 sc1",
             f"buffer_load_dwordx4 v[{R+8}:{R+11}], v{va}, s[{SW}:{SW+3}], s39 offen sc1"]
        if vx is not None:
            L.append(f"buffer_load_ushort v{R+12}, v{vx}, s[{SC}:{SC+3}], 0 offen")
        for t in L:
            if pre:
                pre()
            a(t)

    def xi_check(self, R, va, soff, sdst, t):
        a = self.a
        if not self.fast:
            a(f"s_mov_b32 s{sdst}, 0")
            return
        a(f"buffer_load_dwordx4 v[{R}:{R+3}], v{va}, s[{SW}:{SW+3}], s{soff} offen sc1")
        a(f"s_getreg_b32 s{sdst}, hwreg(HW_REG_XCC_ID, 0, 4)\ns_lshl_b32 s{sdst}, s{sdst}, 8\ns_waitcnt vmcnt(0)")
        for k in range(4):
            a(f"v_xor_b32 v{R+k}, s{S_TB+k}, v{R+k}")
        a(f"v_xor_b32 v{R}, s{sdst}, v{R}\nv_or3_b32 v{t}, v{R+1}, v{R+2}, v{R+3}\nv_or_b32 v{t}, v{t}, v{R}")
        a(f"s_or_b32 s{sdst}, s{sdst}, 0x1000\nv_cmp_ne_u32 vcc, 0, v{t}\ns_cmp_eq_u64 vcc, 0\ns_cselect_b32 s{sdst}, s{sdst}, 0")

    def att(self):
        a = self.a
        KR, VR, Q1, Q2, QA, QM, D, O, SEL, PP, X0, A0, A1 = 8, 104, 200, 204, 208, 216, 224, 236, 240, 244, 247, 248, 252
        vT = 7
        DEP = self.opt.get("dep", 5)
        BUR = self.opt.get("bur", 12)
        a("s_setprio 2")
        a(f"s_sub_u32 s45, s{S_U}, 9\ns_lshl_b32 s46, s45, 2\ns_add_u32 s46, s46, s{S_WAVE}")
        a("s_sub_u32 s69, s46, 46\ns_cmp_ge_u32 s46, 46\ns_cselect_b32 s46, s69, s46\ns_cselect_b32 s47, 1, 0")
        a("s_cmp_eq_u32 s47, 0\ns_cselect_b32 s70, 8, 6\ns_cselect_b32 s71, 44, 34\ns_cselect_b32 s72, 1, -1")
        for dst, off in ((38, 0), (3, 1)):
            a(f"s_add_u32 s73, s46, {off}\ns_min_u32 s74, s73, s70\ns_max_u32 s75, s73, s71\ns_sub_u32 s75, s75, s71\ns_sub_u32 s74, s74, s75")
            a(f"s_mul_i32 s74, s74, s72\ns_mul_i32 s{dst}, s73, 11\ns_add_u32 s{dst}, s{dst}, s74")
        a("s_sub_u32 s3, s3, s38")
        a(f"s_lshl_b32 s46, s{S_X}, 1\ns_add_u32 s46, s46, s47")
        a("s_lshl_b32 s38, s38, 11\ns_lshl_b32 s69, s46, 23\ns_add_u32 s38, s38, s69\ns_add_u32 s38, s38, 7340032")
        a("s_lshl_b32 s39, s3, 11")
        for k in range(5):
            a(f"s_mov_b32 s{70+k}, {4096*(k+1)}")
        a("v_lshrrev_b32 v3, 1, v1\nv_lshlrev_b32 v3, 8, v3\nv_and_b32 v4, 1, v1\nv_lshlrev_b32 v4, 6, v4")
        a("v_add_u32 v3, v3, v4\nv_lshl_add_u32 v3, v2, 4, v3")
        a("v_mul_u32_u24 v4, 6144, v2\nv_lshl_add_u32 v4, v1, 4, v4")
        a(f"s_and_b32 s69, s{S_WAVE}, 2\ns_lshl_b32 s69, s69, 1\ns_add_u32 s69, s69, {A_FLAG}\nv_mov_b32 v5, s69")
        a("s_waitcnt lgkmcnt(0)")
        self.srd(SA, P_K, "s39", add="s38")
        n = [0]

        def thr():
            if n[0] == DEP:
                a("s_barrier")
            if n[0] >= DEP:
                a(f"s_waitcnt vmcnt({DEP-1})")
            n[0] += 1
        for k in range(12):
            if k == 3:
                self.srd(SB, P_V, "s39", add="s38")
                self.ws_setup()
                self.srd(SC, P_X, 1152)
            if k == 7:
                self.tag_setup(vT)
                self.sel_setup(SEL, 200, 201, 202)
            for lvl, at in ((1, self.opt.get("go1", 7)), (2, self.opt.get("go", 8))):
                if k == at:
                    a(f"v_mov_b32 v6, {lvl}\nv_mov_b32 v200, {A_GO}\nds_max_u32 v200, v6")
            if k >= 10:
                a(f"s_cmp_gt_u32 s3, {k}\ns_cbranch_scc0 L_att_k11")
            for lam in range(2):
                r = KR + 8 * k + 4 * lam
                so = "0" if k < 2 else f"s{69 + k // 2}"
                thr()
                a(f"buffer_load_dwordx4 v[{r}:{r+3}], v3, s[{SA}:{SA+3}], {so} offen offset:{(k & 1) * 2048 + lam * 128} nt")
        a.label("L_att_k11")
        after = {t: 23 - t for t in range(24)}

        def vload(t):
            r = VR + 4 * t
            so = "0" if t < 16 else "s70"
            a(f"buffer_load_dwordx4 v[{r}:{r+3}], v4, s[{SB}:{SB+3}], {so} offen offset:{(t & 15) * 256} nt")
        VC = self.opt.get("vc", 18)
        for t in range(VC):
            thr()
            vload(t)
            if t == 2:
                a(f"s_and_b32 s38, s{S_WAVE}, 2\ns_lshl_b32 s38, s38, 8\ns_add_u32 s38, s38, {A_QL}")
                a("v_bfe_u32 v3, v0, 1, 1\nv_lshlrev_b32 v3, 8, v3\nv_and_b32 v6, 1, v0\nv_lshl_add_u32 v3, v6, 6, v3")
                a(f"v_lshl_add_u32 v3, v2, 4, v3\nv_add_u32 v3, s38, v3\nv_lshrrev_b32 v6, 2, v1\nv_mov_b32 v200, {A_ZERO}")
                for m in range(4):
                    a(f"v_cmp_eq_u32 vcc, {m}, v6\nv_cndmask_b32 v{PP+m}, v200, v3, vcc")
            if t == 4:
                a("s_cmp_eq_u32 s45, 11\ns_cselect_b32 s72, 2, 4")
                a(f"s_and_b32 s73, s{S_WAVE}, 2\ns_cmp_eq_u32 s45, 11\ns_cselect_b32 s73, s73, 0")
                for e in range(4):
                    a(f"s_add_u32 s38, s73, {e}\ns_lshl_b32 s{8+e}, s38, 10\ns_add_u32 s{8+e}, s{8+e}, {A_CMB}\ns_lshl_b32 s38, s38, 4\ns_add_u32 s{12+e}, s38, {A_ST}")
                    if e >= 2:
                        a(f"s_cmp_eq_u32 s72, 2\ns_cselect_b32 s{8+e}, {A_ZERO}, s{8+e}\ns_cselect_b32 s{12+e}, {A_NEG}, s{12+e}")
                a(f"s_lshl_b32 s16, s{S_WAVE}, 4\ns_add_u32 s16, s16, {A_ST}\ns_lshl_b32 s17, s{S_WAVE}, 10\ns_add_u32 s17, s17, {A_CMB}\ns_lshl_b32 s18, s73, 1")
                a("s_mul_i32 s38, s47, 11\ns_sub_u32 s38, s45, s38\ns_mul_i32 s39, s46, 12\ns_add_u32 s38, s38, s39")
                a(f"s_mul_i32 s74, s38, {OPSLOT}\ns_add_u32 s74, s74, {OP}\ns_sub_u32 s19, s3, 2\ns_sub_u32 s20, s3, 1")
                a("s_mov_b32 s78, 0xaaaaaaaa\ns_mov_b32 s79, 0xaaaaaaaa\nv_mul_u32_u24 v3, 3, v2")
            if t == self.opt.get("mgv", 99):
                a(f"v_mov_b32 v6, 1\nv_mov_b32 v200, {A_MG}\ns_mov_b64 exec, 1\nds_add_u32 v200, v6\ns_mov_b64 exec, -1")
            if t == BUR - 1:
                self.stamp(9)
            if BUR - 1 <= t < VC - 1:
                a(f"ds_read_b32 v6, v5\ns_waitcnt lgkmcnt(0)\nv_cmp_ne_u32 vcc, 0, v6\ns_cbranch_vccnz L_bur_{t+1}")
        a(f"s_mov_b32 s{S_CNT}, 0")
        a.label("L_q_wait")
        a(f"ds_read_b32 v6, v5\ns_waitcnt lgkmcnt(0)\nv_cmp_ne_u32 vcc, 0, v6\ns_cbranch_vccnz L_bur_{VC}")
        a(f"s_add_u32 s{S_CNT}, s{S_CNT}, 1\ns_cmp_lt_u32 s{S_CNT}, {SPIN_MAX*16}\ns_cbranch_scc1 L_q_wait\ns_branch L_bur_{VC}")
        for t in range(BUR, 24):
            a.label(f"L_bur_{t}")
            vload(t)
        a.label("L_bur_24")
        self.stamp(1)
        if self.opt.get("mg", -1) < 0 and "mgv" not in self.opt:
            a(f"v_mov_b32 v4, {A_MG}\nv_mov_b32 v5, 1\ns_mov_b64 exec, 1\nds_add_u32 v4, v5\ns_mov_b64 exec, -1")
        a("v_readfirstlane_b32 s76, v6")

        self.stamp(2)
        QS_ = (208, 216, 200, 248)
        for m in range(4):
            a(f"ds_read_b128 v[{QS_[m]}:{QS_[m]+3}], v{PP+m}\nds_read_b128 v[{QS_[m]+4}:{QS_[m]+7}], v{PP+m} offset:128")
        for m in range(4):
            a(f"s_waitcnt lgkmcnt({6 - 2 * m})" if not self.stamps else "s_waitcnt lgkmcnt(0)")
            for c in range(3):
                k = 3 * m + c
                if k >= 10:
                    a(f"s_cmp_gt_u32 s3, {k}\ns_cbranch_scc0 L_att_m11")
                for lam in range(2):
                    self.mfma(D + 4 * c, QS_[m] + 4 * lam, KR + 8 * k + 4 * lam, m == 0 and lam == 0)
        a.label("L_att_m11")
        S, Y = 8, 12
        a("v_lshlrev_b32 v19, 4, v0\nv_add_u32 v20, s17, v19")
        for e in range(4):
            a(f"v_add_u32 v{24+e}, s{8+e}, v19")
        a("v_lshrrev_b32 v19, 5, v0\nv_lshlrev_b32 v33, 6, v19\nv_lshlrev_b32 v32, 9, v19\nv_lshlrev_b32 v19, 3, v19")
        for c in range(3):
            a(f"v_cndmask_b32 v{Y+c}, v{D+4*c+2}, v{D+4*c+1}, s[78:79]\nv_cndmask_b32 v{S+c}, v{D+4*c}, v{D+4*c+3}, s[78:79]")
        for c in range(3):
            self.dpp("v_add_f32", S + c, Y + c, S + c, "quad_perm:[1,0,3,2]")
        self.rnd2(S, S + 1, Y)
        self.rnd1(S + 2)
        for c in range(3):
            a(f"v_mul_f32 v{S+c}, {hx(f2u(128 ** -0.5))}, v{S+c}")
        self.rnd2(S, S + 1, Y)
        self.rnd1(S + 2)
        a(f"v_cmp_gt_i32 vcc, s19, v3\nv_cmp_gt_i32 s[78:79], s20, v3\nv_mov_b32 v4, 0xff800000")
        a(f"v_cndmask_b32 v{S+2}, v4, v{S+2}, vcc\nv_cndmask_b32 v{S+1}, v4, v{S+1}, s[78:79]")
        MX, LS = 16, 17
        a(f"v_max3_f32 v{MX}, v{S}, v{S+1}, v{S+2}")
        par = ("quad_perm:[2,3,0,1]", "row_ror:4", "row_ror:8")
        self.row_all("v_max_f32", [MX], par)
        self.xrow_all("v_max_f32", [MX], [18])
        for c in range(3):
            a(f"v_sub_f32 v{S+c}, v{S+c}, v{MX}")
        for c in range(3):
            a(f"v_mul_f32 v{S+c}, {hx(f2u(LOG2E))}, v{S+c}")
        for c in range(3):
            a(f"v_exp_f32 v{S+c}, v{S+c}")
        for c in range(3):
            self.dpp("v_mov_b32", Y + c, S + c, None, "quad_perm:[1,0,3,2]")
        for c in range(3):
            a(f"v_cvt_pk_bf16_f32 v{PP+c}, v{S+c}, v{Y+c}")
        self.stamp(3)
        XS_ = (X0, 6)
        AS_ = (A0, A1)
        TS = self.opt.get("ts", 14)
        WS = 35
        self.dpp("v_mov_b32", XS_[0], PP, None, "row_newbcast:0")
        self.diag(AS_[0], XS_[0], SEL)
        for t in range(24):
            if t == self.opt.get("lsum", 3):
                a(f"v_add_f32 v{LS}, v{S}, v{S+1}\nv_add_f32 v{LS}, v{LS}, v{S+2}")
                a("v_and_b32 v21, 1, v0\nv_lshl_add_u32 v21, v21, 3, s16\nv_mov_b32 v22, s18\nv_mov_b32 v23, 1")
                self.row_all("v_add_f32", [LS], par)
                self.xrow_all("v_add_f32", [LS], [18])
                a(f"s_mov_b64 exec, 3\nds_write_b64 v21, v[{MX}:{LS}]\ns_mov_b64 exec, 1\nds_add_u32 v22, v23 offset:8\ns_mov_b64 exec, -1")
                a("v_add_u32 v21, s16, v19")
                for e in range(4):
                    a(f"v_add_u32 v{28+e}, s{12+e}, v19")
                a("v_lshl_add_u32 v32, v1, 5, v32\nv_and_b32 v34, 1, v2\nv_lshl_add_u32 v32, v34, 4, v32")
                a("v_and_b32 v34, 3, v0\nv_lshl_add_u32 v33, v34, 4, v33")
            if t == self.opt.get("mg", -1):
                a(f"v_mov_b32 v72, {A_MG}\nv_mov_b32 v73, 1\ns_mov_b64 exec, 1\nds_add_u32 v72, v73\ns_mov_b64 exec, -1")
            if t == self.opt.get("hold", 8):
                a(f"v_mov_b32 v72, {A_PUB}\nv_mov_b32 v73, 1\nds_max_u32 v72, v73")
            if t == TS:
                a(f"s_mov_b32 s{S_CNT}, 0")
                a.label("L_st_loop")
                a("ds_read_b32 v72, v22 offset:8")
                for e in range(4):
                    a(f"ds_read_b64 v[{74+2*e}:{75+2*e}], v{28+e}")
                a("ds_read_b32 v82, v21\ns_waitcnt lgkmcnt(0)\nv_cmp_ne_u32 vcc, s72, v72\ns_cbranch_vccnz L_st_retry")
                a.label("L_st_ok")

                def cold_st():
                    a.label("L_st_retry")
                    a(f"s_add_u32 s{S_CNT}, s{S_CNT}, 1\ns_cmp_lt_u32 s{S_CNT}, {SPIN_MAX*8}\ns_cbranch_scc1 L_st_loop\ns_branch L_st_ok")
                self.cold.append(cold_st)
                a("v_max3_f32 v84, v74, v76, v78\nv_max_f32 v84, v84, v80")
                for r in (74, 76, 78, 80, 82):
                    a(f"v_sub_f32 v{r}, v{r}, v84")
                for r in (74, 76, 78, 80, 82):
                    a(f"v_mul_f32 v{r}, {hx(f2u(LOG2E))}, v{r}")
                for r in (74, 76, 78, 80):
                    a(f"v_exp_f32 v{r}, v{r}")
                a(f"v_exp_f32 v{WS}, v82\nv_mul_f32 v85, v74, v75")
                for r in (76, 78, 80):
                    a(f"v_fmac_f32 v85, v{r}, v{r+1}")
                a("v_mov_b32 v86, v84\nv_mov_b32 v87, v85")
                self.tag4(84, vT)
                a("s_mov_b32 s78, 15\ns_mov_b32 s79, 15\ns_mov_b64 exec, s[78:79]")
                if self.fast:
                    a("s_cmp_eq_u32 s76, 2\ns_cbranch_scc0 L_st_slow")
                    a(f"buffer_store_dwordx4 v[84:87], v33, s[{SW}:{SW+3}], s74 offen offset:1024")
                    a.label("L_st_done")

                    def cold_st2():
                        a.label("L_st_slow")
                        a(f"buffer_store_dwordx4 v[84:87], v33, s[{SW}:{SW+3}], s74 offen offset:1024 sc1\ns_branch L_st_done")
                    self.cold.append(cold_st2)
                else:
                    a(f"buffer_store_dwordx4 v[84:87], v33, s[{SW}:{SW+3}], s74 offen offset:1024 sc1")
                a("s_mov_b64 exec, -1\ns_sub_u32 s72, s72, 1")
            if t + 1 < 24:
                self.dpp("v_mov_b32", XS_[(t + 1) & 1], PP + ((t + 1) >> 3), None, f"row_newbcast:{2 * ((t + 1) & 7)}")
            a(f"s_waitcnt vmcnt({after[t] + (1 if t >= TS else 0)})")
            self.mfma(O, AS_[t & 1], VR + 4 * t, t == 0)
            if t + 1 < 24:
                self.diag(AS_[(t + 1) & 1], XS_[(t + 1) & 1], SEL)
        self.stamp(4)
        for r in range(4):
            a(f"v_mul_f32 v{O+r}, v{WS}, v{O+r}")
        a(f"ds_write_b128 v20, v[{O}:{O+3}]")
        a("s_mov_b64 exec, 1\nds_add_rtn_u32 v23, v22, v23\ns_mov_b64 exec, -1")
        for e in range(4):
            a(f"ds_read_b128 v[{72+4*e}:{75+4*e}], v{24+e}")
        a("s_waitcnt lgkmcnt(4)" if not self.stamps else "s_waitcnt lgkmcnt(0)")
        a("v_readfirstlane_b32 s38, v23")
        a("s_cmp_eq_u32 s38, s72\ns_cbranch_scc0 L_att_done")
        a("s_waitcnt lgkmcnt(2)" if not self.stamps else "s_nop 0")
        a("v_pk_add_f32 v[72:73], v[72:73], v[76:77]\nv_pk_add_f32 v[74:75], v[74:75], v[78:79]")
        a("s_waitcnt lgkmcnt(0)")
        a("v_pk_add_f32 v[80:81], v[80:81], v[84:85]\nv_pk_add_f32 v[82:83], v[82:83], v[86:87]")
        a("v_pk_add_f32 v[72:73], v[72:73], v[80:81]\nv_pk_add_f32 v[74:75], v[74:75], v[82:83]")
        self.tag4(72, vT)
        if self.fast:
            a("s_cmp_eq_u32 s76, 2\ns_cbranch_scc0 L_att_slow")
            a(f"buffer_store_dwordx4 v[72:75], v32, s[{SW}:{SW+3}], s74 offen")

            def cold_o():
                a.label("L_att_slow")
                a(f"buffer_store_dwordx4 v[72:75], v32, s[{SW}:{SW+3}], s74 offen sc1\ns_branch L_att_pub")
            self.cold.append(cold_o)
        else:
            a(f"buffer_store_dwordx4 v[72:75], v32, s[{SW}:{SW+3}], s74 offen sc1")
        a.label("L_att_pub")
        a(f"v_mov_b32 v76, {A_PUB}\nds_write_b32 v76, v76")
        a.label("L_att_done")
        self.stamp(5)
        a("s_waitcnt lgkmcnt(0)")
        a("s_sub_u32 s38, s45, 2\ns_cmp_lt_u32 s38, 18\ns_cbranch_scc0 L_att_exit")
        a(f"s_lshl_b32 s77, s{S_WAVE}, 8")
        self.const_addr(77, 54, 55)
        self.const_loads(40, 54, 55)
        a("s_waitcnt vmcnt(0)\ns_branch L_s4")
        a.label("L_att_exit")
        self.dump_stamps()
        a("s_endpgm")

    M_W1, M_W2, M_W2T, M_XR, M_SEL, M_MSK, M_DA, M_DB, M_A0, M_A1 = 72, 108, 140, 208, 228, 232, 236, 240, 244, 248
    M_VX, M_VP, M_VS, M_B1 = 252, 253, 254, 255

    def mlpw(self):
        a = self.a
        vT = 7
        DM = self.opt.get("dm", 30)
        a.label("L_mlpw")
        a(f"s_sub_u32 s45, s{S_U}, 9\ns_sub_u32 s46, s{S_WAVE}, 4")
        a("s_mov_b32 s44, 0\ns_cmp_lt_u32 s46, 2\ns_cbranch_scc1 L_mlpw_go\ns_sub_u32 s38, s45, 2\ns_cmp_lt_u32 s38, 18\ns_cbranch_scc0 L_end")
        a("s_cmp_eq_u32 s46, 2\ns_cbranch_scc1 L_tile_a")
        a.label("L_mlpw_go")
        a("s_cmp_eq_u32 s46, 0\ns_cbranch_scc0 L_mlpw_noinit")
        a("v_mov_b32 v3, 0\nv_mov_b32 v8, 0\nv_mov_b32 v9, 0\nv_mov_b32 v10, 0\nv_mov_b32 v11, 0\nv_lshlrev_b32 v6, 4, v0")
        a("v_mov_b32 v12, 0xff800000\nv_mov_b32 v13, 0\nv_mov_b32 v14, 0xff800000\nv_mov_b32 v15, 0")
        a(f"ds_write_b128 v3, v[8:11] offset:{A_CNT}\nds_write_b128 v3, v[12:15] offset:{A_NEG}\nds_write_b128 v6, v[8:11] offset:{A_ZERO}")
        a(f"ds_write_b128 v3, v[8:11] offset:{A_FLAG}\nds_write_b128 v3, v[8:11] offset:{A_PUB}")
        a.label("L_mlpw_noinit")
        a(f"s_mul_i32 s38, s46, 384\ns_add_u32 s38, s38, {A_XS}")
        a(f"v_lshl_add_u32 v{self.M_VX}, v0, 1, s38")
        a(f"v_lshl_add_u32 v3, v2, 2, s38")
        a(f"s_lshl_b32 s38, s46, 8\ns_add_u32 s38, s38, {A_F1P}")
        a(f"v_lshlrev_b32 v4, 5, v1\nv_lshl_add_u32 v226, v2, 4, v4\nv_add_u32 v{self.M_VP}, s38, v226")
        a("s_and_b32 s77, s45, 1")
        a("v_and_b32 v4, 31, v0\nv_lshlrev_b32 v4, 2, v4\nv_lshrrev_b32 v5, 5, v0\nv_lshl_add_u32 v227, v5, 8, v4\nv_lshl_add_u32 v4, v5, 9, v4")
        a(f"s_lshl_b32 s38, s77, 7\ns_add_u32 s38, s38, {A_F1P}\nv_add_u32 v{self.M_VS}, s38, v4")
        a("v_lshrrev_b32 v4, 3, v1\nv_lshl_add_u32 v4, v2, 1, v4\nv_and_b32 v5, 7, v1\nv_lshlrev_b32 v5, 4, v5")
        a("s_cmp_eq_u32 s44, 0\ns_cbranch_scc0 L_mlpw_t")
        a("s_waitcnt lgkmcnt(0)\ns_barrier")
        self.ws_setup()
        self.tag_setup(vT)
        a.label("L_mlpw_t")
        a("s_waitcnt lgkmcnt(0)")
        a(f"v_mov_b32 v{vT}, s{S_T}")
        self.sel_setup(self.M_SEL, 8, 9, 13)
        a(f"s_mul_i32 s47, s{S_X}, 18\ns_add_u32 s47, s47, s45\ns_sub_u32 s47, s47, 2")
        self.srd(SA, P_W1, 576 * 9216)
        self.srd(SB, P_W2, 4608 * 1152)
        self.srd(12, P_B1, 9216)
        a("v_mul_u32_u24 v6, 9216, v4\nv_add_u32 v6, v6, v5")
        a(f"s_lshl_b32 s70, s77, 2\ns_add_u32 s70, s70, s46\ns_mul_i32 s18, s70, 288\ns_mul_i32 s70, s70, {72*9216}")
        a("s_lshr_b32 s39, s47, 1\ns_lshl_b32 s39, s39, 7\ns_add_u32 s70, s70, s39\ns_lshl_b32 s39, s47, 6")
        a(f"s_lshl_b32 s19, s47, 9\ns_lshl_b32 s38, s46, 7\ns_add_u32 s19, s19, s38\ns_add_u32 s19, s19, {EX-128}\ns_lshl_b32 s38, s77, 7\ns_add_u32 s19, s19, s38")
        a(f"s_xor_b32 s16, s47, 1\ns_lshl_b32 s16, s16, 9\ns_add_u32 s16, s16, {EX}")
        a("s_mov_b32 s74, 0x000f000f\ns_lshl_b32 s38, s77, 2\ns_sub_u32 s38, 4, s38\ns_lshl_b32 s74, s74, s38\ns_mov_b32 s21, s74")
        a("v_and_b32 v8, 1, v0\nv_lshlrev_b32 v8, 4, v8\nv_mov_b32 v9, 0xffff\nv_lshlrev_b32 v8, v8, v9\nv_bfe_u32 v9, v0, 1, 2")
        for d in range(4):
            a(f"v_cmp_eq_u32 vcc, {d}, v9\nv_cndmask_b32 v{self.M_MSK+d}, 0, v8, vcc")
        a(f"v_and_b32 v8, 31, v0\nv_lshl_add_u32 v{self.M_B1}, v8, 1, s39")
        self.srd(SC, P_X, 1152)
        a("v_and_b32 v8, 1, v2\nv_lshlrev_b32 v8, 4, v8\nv_lshrrev_b32 v9, 1, v2\nv_lshl_add_u32 v8, v9, 3, v8")
        a("v_mul_u32_u24 v8, 1152, v8\nv_lshl_add_u32 v8, v1, 4, v8")
        a("v_cmp_gt_u32 vcc, 8, v1\nv_mov_b32 v9, 0x7fffffff\nv_cndmask_b32 v9, v9, v8, vcc")
        a(f"s_mul_i32 s71, s47, {32*1152}\ns_lshl_b32 s72, s46, 8\ns_add_u32 s72, s72, s71\ns_add_u32 s73, s72, 4608")
        a(f"s_lshl_b32 s77, s{S_WAVE}, 8\ns_mov_b32 s76, 2048")
        self.const_addr(77, 54, 55)
        self.const_addr(76, 70, 71)
        a("s_cmp_lt_u32 s46, 2\ns_cbranch_scc0 L_mlpw_gate")
        a("s_lshl_b32 s38, s45, 1\ns_add_u32 s38, s38, s46\ns_cmp_ge_u32 s38, 23\ns_cselect_b32 s38, 1, 0")
        a(f"s_lshl_b32 s39, s{S_X}, 1\ns_add_u32 s38, s38, s39\ns_lshl_b32 s74, s38, 10\ns_add_u32 s74, s74, {QB}")
        a("v_lshlrev_b32 v10, 4, v0")
        a(f"s_lshl_b32 s38, s46, 9\ns_add_u32 s38, s38, {A_QL}\nv_lshl_add_u32 v12, v0, 3, s38")
        a(f"s_lshl_b32 s38, s46, 2\ns_add_u32 s38, s38, {A_FLAG}\nv_mov_b32 v13, s38")
        a("s_getreg_b32 s69, hwreg(HW_REG_XCC_ID, 0, 4)\ns_lshl_b32 s69, s69, 8\ns_or_b32 s69, s69, 0x1000")
        self.lds_wait(A_GO, 2, 11, 14, 4, "L_go")
        a("s_setprio 3")
        NP = self.opt.get("np", 2)

        def qload(k):
            a(f"buffer_load_dwordx4 v[{16+4*k}:{19+4*k}], v10, s[{SW}:{SW+3}], s74 offen sc1")
        self.stamp(7)
        for k in range(NP):
            qload(k)
            if k + 1 < NP:
                a(f"s_sleep {self.opt.get('qgap', 12)}")
        a(f"s_mov_b32 s{S_CNT}, 0")
        a.label("L_qp_loop")
        for k in range(NP):
            self.clean([16 + 4 * k], [], None, 14, waits=[NP - 1])
            a(f"s_cbranch_vccz L_qp_ok{k}")
            qload(k)
        a(f"s_add_u32 s{S_CNT}, s{S_CNT}, 1\ns_cmp_lt_u32 s{S_CNT}, {SPIN_MAX}\ns_cbranch_scc1 L_qp_loop")
        a("s_waitcnt vmcnt(0)")
        for k in range(NP - 1, -1, -1):
            a.label(f"L_qp_ok{k}")
            a(f"s_mov_b32 s38, 0x07060302\nv_perm_b32 v14, v{17+4*k}, v{16+4*k}, s38\nv_perm_b32 v15, v{19+4*k}, v{18+4*k}, s38")
            a(f"v_and_b32 v11, 0x1f00, v{16+4*k}")
            if k:
                a("s_branch L_qp_got")
        a.label("L_qp_got")
        a("ds_write_b64 v12, v[14:15]\nv_cmp_ne_u32 vcc, s69, v11\ns_cmp_eq_u64 vcc, 0\ns_cselect_b32 s69, 2, 1\nv_mov_b32 v11, s69")
        a("ds_write_b32 v13, v11\ns_waitcnt lgkmcnt(0)")
        self.stamp(8)
        a("s_setprio 0\ns_sub_u32 s38, s45, 2\ns_cmp_lt_u32 s38, 18\ns_cbranch_scc0 L_att_exit")
        a.label("L_mlpw_gate")
        self.lds_wait(A_MG, self.opt.get("mgn", 4), 11, 14, 2, "L_mg")
        self.stamp(1)
        D1 = self.opt.get("dm1", 12)
        a("s_cmp_eq_u32 s46, 0\ns_cbranch_scc0 L_mlp_c1")
        self.const_loads(56, 70, 71)
        a.label("L_mlp_c1")
        self.const_loads(40, 54, 55)
        a(f"buffer_load_ushort v{self.M_B1}, v{self.M_B1}, s[12:15], 0 offen nt")
        a(f"v_mov_b32 v11, {A_PUB}")
        seq = []
        for s in range(9):
            r = self.M_W1 + 4 * s
            seq.append(f"buffer_load_dwordx4 v[{r}:{r+3}], v6, s[{SA}:{SA+3}], s70 offen nt" + (f"\ns_add_u32 s70, s70, {8*9216}" if s < 8 else ""))
        w2 = [f"buffer_load_dwordx4 v[{self.M_W2+4*s}:{self.M_W2+4*s+3}], v8, s[{SB}:{SB+3}], {'s72' if s < 4 else 's73'} offen offset:{(s & 3) * 1152} nt" for s in range(8)]
        if self.opt.get("il", 1):
            seq = [x for pair in zip(seq, w2 + [None]) for x in pair if x]
        else:
            seq += w2
        for k, t in enumerate(seq):
            a(f"s_waitcnt vmcnt({D1-1})")
            a(t)
            if k + 1 < len(seq):
                a(f"ds_read_b32 v14, v11\ns_waitcnt lgkmcnt(0)\nv_cmp_ne_u32 vcc, 0, v14\ns_cbranch_vccnz L_mh_{k+1}")
        a(f"s_branch L_mb_{len(seq)}")

        def cold_hold():
            for k in range(1, len(seq)):
                a.label(f"L_mh_{k}")
                a(f"s_mov_b32 s{S_CNT}, 0")
                a.label(f"L_mh_{k}_l")
                a(f"v_cmp_lt_u32 vcc, 1, v14\ns_cbranch_vccnz L_mb_{k}\nds_read_b32 v14, v11\ns_add_u32 s{S_CNT}, s{S_CNT}, 1")
                a(f"s_cmp_lt_u32 s{S_CNT}, {SPIN_MAX*8}\ns_waitcnt lgkmcnt(0)\ns_cbranch_scc1 L_mh_{k}_l\ns_branch L_mb_{k}")
        self.cold.append(cold_hold)
        for k, t in enumerate(seq):
            if k:
                a.label(f"L_mb_{k}")
                if DM < 17:
                    a(f"s_waitcnt vmcnt({DM-1})")
                a(t)
        a.label(f"L_mb_{len(seq)}")
        a("s_cmp_eq_u32 s46, 3\ns_cbranch_scc0 L_mlp_issued")
        a("s_add_u32 s72, s71, 1024\ns_add_u32 s73, s72, 4608")
        for s in range(8):
            r = self.M_W2T + 4 * s
            if DM < 25:
                a(f"s_waitcnt vmcnt({DM-1})")
            a(f"buffer_load_dwordx4 v[{r}:{r+3}], v9, s[{SB}:{SB+3}], {'s72' if s < 4 else 's73'} offen offset:{(s & 3) * 1152} nt")
        a.label("L_mlp_issued")
        a(f"buffer_load_dword v30, v227, s[{SW}:{SW+3}], s16 offen sc1\nbuffer_load_dword v31, v227, s[{SW}:{SW+3}], s16 offen offset:128 sc1")
        a("s_waitcnt vmcnt(19)")

    def stat_reduce(self, v, t, vaddrA, vaddrB):
        a = self.a
        for p in range(3):
            a(f"v_permlane32_swap_b32 v{v+2*p}, v{v+2*p+1}")
        for p in range(3):
            a(f"v_add_f32 v{v+2*p}, v{v+2*p}, v{v+2*p+1}")
        a(f"v_mov_b32 v{t}, v{v+4}\nv_permlane16_swap_b32 v{v}, v{v+2}\nv_permlane16_swap_b32 v{t}, v{v+4}")
        a(f"v_add_f32 v{v}, v{v}, v{v+2}\nv_add_f32 v{v+4}, v{v+4}, v{t}")
        self.row_all("v_add_f32", [v, v + 4])
        a("s_mov_b64 exec, s[78:79]")
        a(f"ds_write_b32 v{vaddrA}, v{v}\nds_write_b32 v{vaddrB}, v{v+4}")
        a("s_mov_b64 exec, -1")

    def s4_block(self, boff, sfx):
        a = self.a
        o = 0 if sfx == 0 else 24
        R, va = (40, 54) if sfx == 0 else (56, 70)
        XV, GA, AV, BV = 8 + o, 9 + o, 10 + o, 11 + o
        lp, rt = self.lab("cst"), self.lab("cstr")
        a(f"s_mov_b32 s{S_CNT}, 0")
        a.label(lp)
        self.clean([R, R + 4, R + 8], [], None, 4)
        a(f"s_cbranch_vccnz {rt}")
        a.label(lp + "_ok")

        def cold():
            a.label(rt)
            self.const_loads(R, va, None)
            a(f"s_add_u32 s{S_CNT}, s{S_CNT}, 1\ns_cmp_lt_u32 s{S_CNT}, {SPIN_MAX}\ns_waitcnt vmcnt(0)\ns_cbranch_scc1 {lp}\ns_branch {lp}_ok")
        self.cold.append(cold)
        for k in range(3):
            self.rscatter(R + 4 * k)
        self.rnd2(R, R + 4, 4)
        self.rnd1(R + 8)
        a(f"v_lshlrev_b32 v{XV}, 16, v{R+12}\nv_mov_b32 v{GA}, v{R}\nv_mov_b32 v{BV}, v{R+4}\nv_add_f32 v{AV}, 1.0, v{R+8}")
        self.rnd1(AV)
        a(f"v_lshlrev_b32 v{12+o}, 4, v1\nv_lshl_add_u32 v{12+o}, v2, 2, v{12+o}\nv_add_u32 v{12+o}, s{boff}, v{12+o}")
        a(f"ds_write_b32 v{12+o}, v{AV} offset:{A_AA}\nds_write_b32 v{12+o}, v{BV} offset:{A_BB}")
        a(f"s_lshr_b32 s38, s{boff}, 2\ns_add_u32 s38, s38, {A_STAT}")
        a(f"v_and_b32 v{14+o}, 1, v2\nv_lshlrev_b32 v{14+o}, 3, v{14+o}\nv_lshrrev_b32 v{15+o}, 1, v2\nv_lshlrev_b32 v{15+o}, 2, v{15+o}")
        a(f"v_add3_u32 v{14+o}, v{14+o}, v{15+o}, s38\nv_add3_u32 v{15+o}, v{15+o}, 16, s38")
        a(f"v_add_u32 v{16+o}, 32, v{14+o}\nv_add_u32 v{17+o}, 32, v{15+o}")
        E = 18 + o
        a(f"v_mov_b32 v{E}, v{AV}\nv_mul_f32 v{E+1}, v{AV}, v{AV}\nv_mul_f32 v{E+2}, v{AV}, v{BV}")
        a(f"v_mov_b32 v{E+3}, v{BV}\nv_mul_f32 v{E+4}, v{BV}, v{BV}\nv_mov_b32 v{E+5}, 0")
        self.stat_reduce(E, E + 6, 16 + o, 17 + o)
        a(f"v_mul_u32_u24 v{13+o}, 2304, v2\nv_lshl_add_u32 v{13+o}, v1, 4, v{13+o}\nv_add_u32 v{13+o}, s{boff}, v{13+o}")

    def s4_finish(self, blocks):
        a = self.a
        for G0, o in blocks:
            a(f"v_pk_add_f32 v[{G0}:{G0+1}], v[{G0}:{G0+1}], v[{G0+4}:{G0+5}]\nv_pk_add_f32 v[{G0+2}:{G0+3}], v[{G0+2}:{G0+3}], v[{G0+6}:{G0+7}]")
        for G0, o in blocks:
            self.rscatter(G0)
        for G0, o in blocks:
            XV, GA, AV, BV = 8 + o, 9 + o, 10 + o, 11 + o
            E = 18 + o
            a(f"v_fma_f32 v{E}, v{GA}, v{G0}, v{XV}")
            a(f"v_mul_f32 v{E+2}, v{AV}, v{E}\nv_mul_f32 v{E+1}, v{E}, v{E}")
            a(f"ds_write_b32 v{12+o}, v{E+2} offset:{A_U}")
            a(f"v_mul_f32 v{E+3}, v{AV}, v{E+2}\nv_mul_f32 v{E+4}, v{E+2}, v{E+2}\nv_mul_f32 v{E+5}, v{BV}, v{E+2}")
        for G0, o in blocks:
            self.stat_reduce(18 + o, 24 + o, 14 + o, 15 + o)

    def poll(self, loads, grans, words, vtb, acc, sleep=0, waits=None):
        a = self.a
        lp = self.lab("poll")
        a(f"s_mov_b32 s{S_CNT}, 0")
        a.label(lp)
        for t in loads:
            a(t)
        n = len(loads)
        self.clean(grans, words, vtb, acc, waits or [n - 1 - k for k in range(n)])
        a(f"s_cbranch_vccnz {lp}_r")
        a.label(lp + "_ok")

        def cold():
            a.label(lp + "_r")
            if sleep:
                a(f"s_sleep {sleep}")
            a(f"s_add_u32 s{S_CNT}, s{S_CNT}, 1\ns_cmp_lt_u32 s{S_CNT}, {SPIN_MAX}\ns_cbranch_scc1 {lp}\ns_branch {lp}_ok")
        self.cold.append(cold)

    def s4_and_mlp(self):
        a = self.a
        vT = 7
        a.label("L_s4")
        a("s_setprio 3")
        self.stamp(6)
        a("s_mov_b32 s78, 0x00010001\ns_mov_b32 s79, 0x00010001")
        self.s4_block(77, 0)
        a(f"s_mov_b32 s74, {AP}\ns_mov_b32 s75, {AP + 4*2304}")
        a(f"s_cmp_eq_u32 s{S_WAVE}, 4\ns_cbranch_scc1 L_s4_two")
        self.poll([f"buffer_load_dwordx4 v[56:59], v13, s[{SW}:{SW+3}], s74 offen sc1",
                   f"buffer_load_dwordx4 v[60:63], v13, s[{SW}:{SW+3}], s75 offen sc1"], [56, 60], [], None, 4)
        self.stamp(7)
        self.s4_finish([(56, 0)])
        a.label("L_s4_bar")
        a("s_waitcnt lgkmcnt(0)\ns_barrier")
        a(f"s_cmp_ge_u32 s{S_WAVE}, 4\ns_cbranch_scc0 L_att_exit")

        def cold_two():
            a.label("L_s4_two")
            self.s4_block(76, 1)
            self.poll([f"buffer_load_dwordx4 v[56:59], v13, s[{SW}:{SW+3}], s74 offen sc1",
                       f"buffer_load_dwordx4 v[60:63], v13, s[{SW}:{SW+3}], s75 offen sc1",
                       f"buffer_load_dwordx4 v[64:67], v37, s[{SW}:{SW+3}], s74 offen sc1",
                       f"buffer_load_dwordx4 v[68:71], v37, s[{SW}:{SW+3}], s75 offen sc1"], [56, 60, 64, 68], [], None, 4)
            self.stamp(7)
            self.s4_finish([(56, 0), (64, 24)])
            a("s_branch L_s4_bar")
        self.cold.insert(0, cold_two)
        self.stamp(2)
        a(f"v_lshlrev_b32 v8, 2, v0\nv_add_u32 v9, {A_STAT}, v8")
        a("v_add_u32 v8, s18, v8")
        a("ds_read2st64_b32 v[10:11], v9 offset0:0 offset1:1\nds_read_b32 v12, v9 offset:512")
        for k, base in enumerate((A_U, A_AA, A_BB)):
            a(f"v_add_u32 v13, {base}, v8")
            a(f"ds_read2st64_b32 v[{16+4*k}:{17+4*k}], v13 offset0:0 offset1:1")
        a("v_cmp_gt_u32 vcc, 16, v0")
        a("s_waitcnt lgkmcnt(3)" if not self.stamps else "s_waitcnt lgkmcnt(0)")
        a("v_cndmask_b32 v12, 0, v12, vcc\nv_add_f32 v10, v10, v11\nv_add_f32 v10, v10, v12")
        self.xrow_all("v_add_f32", [10], [11])
        a(f"v_mul_f32 v10, {hx(f2u(1.0/576))}, v10")
        names = dict(m=0, e2=1, ax=2, aax=3, aaxx=4, abx=5, sa=8, saa=9, sab=10, sb=11, sbb=12)
        R = {}
        for n, (nm, k) in enumerate(names.items()):
            R[nm] = 30 + n
            self.dpp("v_mov_b32", 30 + n, 10, None, f"row_newbcast:{k}")
        m, e2, ax, aax, aaxx, abx, sa, saa, sab, sb, sbb = (R[k] for k in names)
        a(f"v_fma_f32 v{e2}, -v{m}, v{m}, v{e2}\nv_add_f32 v{e2}, {hx(f2u(1e-5))}, v{e2}\nv_rsq_f32 v{e2}, v{e2}")
        a(f"v_fma_f32 v{ax}, -v{m}, v{sa}, v{ax}")
        a(f"v_fma_f32 v{abx}, -v{m}, v{sab}, v{abx}")
        a(f"v_fma_f32 v{saa}, v{m}, v{saa}, -v{aax}\nv_sub_f32 v{saa}, v{saa}, v{aax}\nv_fma_f32 v{aaxx}, v{m}, v{saa}, v{aaxx}")
        a(f"v_fma_f32 v{ax}, v{e2}, v{ax}, v{sb}")
        a(f"v_add_f32 v{abx}, v{abx}, v{abx}\nv_fma_f32 v{aaxx}, v{e2}, v{aaxx}, v{abx}\nv_fma_f32 v{aaxx}, v{e2}, v{aaxx}, v{sbb}")
        a(f"v_fma_f32 v{aaxx}, -v{ax}, v{ax}, v{aaxx}\nv_add_f32 v{aaxx}, {hx(f2u(1e-5))}, v{aaxx}\nv_rsq_f32 v{aaxx}, v{aaxx}")
        a(f"v_mul_f32 v{e2}, v{e2}, v{aaxx}\nv_mul_f32 v{ax}, -v{ax}, v{aaxx}\nv_mul_f32 v{m}, -v{m}, v{e2}")
        a("s_waitcnt lgkmcnt(0)")
        for k in range(2):
            a(f"v_fma_f32 v{24+k}, v{aaxx}, v{24+k}, v{ax}")
        for k in range(2):
            a(f"v_fma_f32 v{24+k}, v{m}, v{20+k}, v{24+k}")
        for k in range(2):
            a(f"v_fma_f32 v{24+k}, v{e2}, v{16+k}, v{24+k}")
        a("v_cvt_pk_bf16_f32 v24, v24, v25")
        a(f"ds_write_b16 v{self.M_VX}, v24\nds_write_b16_d16_hi v{self.M_VX}, v24 offset:128")
        XR = self.M_XR
        for s in range(0, 8, 2):
            a(f"ds_read2_b32 v[{XR+s}:{XR+s+1}], v3 offset0:{4*s} offset1:{4*s+4}")
        a(f"ds_read_b32 v{XR+8}, v3 offset:128")
        a(f"v_lshlrev_b32 v{self.M_B1}, 16, v{self.M_B1}")
        a("v_lshlrev_b32 v8, 5, v1\nv_lshl_add_u32 v8, v2, 4, v8\nv_and_b32 v10, 3, v0")
        self.tagbyte(9, 10, vT)
        a(f"s_mul_i32 s38, s47, 2304\ns_add_u32 s38, s38, {FP}\ns_lshl_b32 s39, s46, 9\ns_add_u32 s39, s39, s38")
        a("s_waitcnt lgkmcnt(0)")
        self.stamp(3)
        Da, Db = self.M_DA, self.M_DB
        AS_ = (self.M_A0, self.M_A1)
        self.diag(AS_[0], XR, self.M_SEL)
        for s in range(9):
            if s + 1 < 9:
                self.diag(AS_[(s + 1) & 1], XR + s + 1, self.M_SEL)
            self.mfma(Db, AS_[s & 1], self.M_W1 + 4 * s, s == 0)
        self.fold2(Db, self.M_A0)
        a("s_mov_b32 exec_hi, 0\ns_mov_b32 exec_lo, 0x00ff00ff")
        a(f"ds_write_b128 v{self.M_VP}, v[{Db}:{Db+3}]")
        for k in range(4):
            a(f"v_perm_b32 v{40+k}, v{Db+k}, v{vT}, s{4+k}")
        a("s_mov_b32 exec_lo, s21")
        a(f"buffer_store_dwordx4 v[40:43], v226, s[{SW}:{SW+3}], s19 offen")
        a("s_mov_b64 exec, -1\ns_waitcnt lgkmcnt(0)\ns_barrier")
        self.stamp(4)
        a(f"ds_read2st64_b32 v[16:17], v{self.M_VS} offset0:0 offset1:1")
        a(f"s_mov_b32 s{S_CNT}, 0")
        a.label("L_ex")
        a(f"buffer_load_dword v18, v227, s[{SW}:{SW+3}], s16 offen sc1\nbuffer_load_dword v19, v227, s[{SW}:{SW+3}], s16 offen offset:128 sc1")
        self.clean([], [18, 19], 9, 10, waits=[1, 0])
        a("s_cbranch_vccnz L_ex_r")
        a.label("L_ex_ok")

        def resend():
            a("s_mov_b32 exec_hi, 0\ns_mov_b32 exec_lo, s21")
            a(f"buffer_store_dwordx4 v[40:43], v226, s[{SW}:{SW+3}], s19 offen sc1")

        def cold_ex():
            a.label("L_ex_r")
            a(f"s_cmp_eq_u32 s{S_CNT}, 6\ns_cbranch_scc0 L_ex_r2")
            resend()
            a("s_mov_b64 exec, -1")
            a.label("L_ex_r2")
            a(f"s_add_u32 s{S_CNT}, s{S_CNT}, 1\ns_cmp_lt_u32 s{S_CNT}, {SPIN_MAX}\ns_cbranch_scc1 L_ex\ns_branch L_ex_ok")
        self.cold.append(cold_ex)
        K1 = -2.0 * 0.7978845608028654 * LOG2E
        a(f"v_mov_b32 v12, {hx(f2u(K1))}")
        a("s_waitcnt lgkmcnt(0)\nv_pk_add_f32 v[16:17], v[16:17], v[18:19]")
        a("v_add_f32 v16, v16, v17\nv_mov_b32 v10, v16\nv_permlane32_swap_b32 v10, v16")
        a(f"v_add_f32 v16, v16, v10\nv_add_f32 v16, v16, v{self.M_B1}")
        a(f"v_mul_f32 v10, v16, v16\nv_fmac_f32 v12, {hx(f2u(K1 * 0.044715))}, v10\nv_mul_f32 v12, v12, v16")
        a("v_exp_f32 v12, v12\nv_add_f32 v12, 1.0, v12\nv_rcp_f32 v12, v12\nv_mul_f32 v16, v16, v12")
        a("v_cvt_pk_bf16_f32 v16, v16, v16")
        self.dpp("v_mov_b32", 16, 16, None, "row_ror:8", rm=0xc)

        def prep(s):
            for d in range(4):
                self.dpp("v_and_b32", AS_[s & 1] + d, 16, self.M_MSK + d, f"row_newbcast:{s}")
        a("s_cmp_eq_u32 s46, 3\ns_cbranch_scc1 L_f2_two")
        prep(0)
        for s in range(8):
            if s + 1 < 8:
                prep(s + 1)
            self.mfma(Da, AS_[s & 1], self.M_W2 + 4 * s, s == 0)
        self.tag4(Da, vT)
        a("s_mov_b32 exec_hi, 0")
        a(f"buffer_store_dwordx4 v[{Da}:{Da+3}], v8, s[{SW}:{SW+3}], s39 offen sc1")
        self.stamp(5)
        resend()
        self.dump_stamps()
        a("s_endpgm")
        a.label("L_f2_two")
        prep(0)
        for s in range(8):
            if s + 1 < 8:
                prep(s + 1)
            self.mfma(Da, AS_[s & 1], self.M_W2 + 4 * s, s == 0)
            self.mfma(Db, AS_[s & 1], self.M_W2T + 4 * s, s == 0)
        self.tag4(Da, vT)
        self.tag4(Db, vT)
        a("s_mov_b32 exec_hi, 0")
        a(f"buffer_store_dwordx4 v[{Da}:{Da+3}], v8, s[{SW}:{SW+3}], s39 offen sc1")
        a("s_mov_b32 exec_lo, 0x00ff00ff")
        a(f"buffer_store_dwordx4 v[{Db}:{Db+3}], v8, s[{SW}:{SW+3}], s38 offen offset:2048 sc1")
        self.stamp(5)
        resend()
        self.dump_stamps()
        a("s_endpgm")

    def lds_wait(self, addr, lvl, va, vd, sleep, name):
        a = self.a
        a(f"v_mov_b32 v{va}, {addr}\ns_mov_b32 s{S_CNT}, 0")
        a.label(name)
        a(f"ds_read_b32 v{vd}, v{va}\ns_waitcnt lgkmcnt(0)\nv_cmp_le_u32 vcc, {lvl}, v{vd}\ns_cbranch_vccnz {name}_ok")
        if sleep:
            a(f"s_sleep {sleep}")
        a(f"s_add_u32 s{S_CNT}, s{S_CNT}, 1\ns_cmp_lt_u32 s{S_CNT}, {SPIN_MAX*8}\ns_cbranch_scc1 {name}")
        a.label(name + "_ok")

    def wcu(self):
        a = self.a
        MB, WO, XA, XB, XO, XR, A0, A1, D, SEL, vT, TB, HG, OG, ST = 16, 88, 152, 156, 157, 160, 180, 184, 188, 192, 196, 197, 200, 220, 244
        VWO, VRW, VRR, VCOL, VQ = 248, 249, 250, 251, 252
        AS_ = (A0, A1)

        def tile_loads(dep=99):
            a("s_mul_i32 s38, s46, 288\nv_lshl_add_u32 v6, v0, 1, s38")
            for k in range(3):
                a(f"buffer_load_ushort v{10+k}, v6, s[{SC}:{SC+3}], 0 offen offset:{128*k}")
            a("v_mul_u32_u24 v6, 6912, v3\nv_add_u32 v6, v6, v4")
            a(f"s_mul_i32 s38, s46, {144*6912}\ns_lshl_b32 s39, s45, 7\ns_add_u32 s38, s38, s39")
            for s in range(18):
                r = MB + 4 * s
                if s >= dep:
                    a(f"s_waitcnt vmcnt({dep-1})")
                a(f"buffer_load_dwordx4 v[{r}:{r+3}], v6, s[{SA}:{SA+3}], s38 offen nt")
                if s < 17:
                    a(f"s_add_u32 s38, s38, {8*6912}")

        def gemv18(younger):
            self.diag(A0, XR, SEL)
            for s in range(18):
                a(f"s_waitcnt vmcnt({younger + 17 - s})")
                self.mfma(D, AS_[s & 1], MB + 4 * s, s == 0)
                if s + 1 < 18:
                    self.diag(AS_[(s + 1) & 1], XR + s + 1, SEL)

        def tile_gemv(younger, low, sxs):
            a(f"v_lshl_add_u32 v13, v0, 1, {sxs}\nv_lshl_add_u32 v14, v2, 2, {sxs}")
            a(f"s_mul_i32 s70, s46, {MPS}\ns_lshl_b32 s39, s45, 8\ns_add_u32 s70, s70, s39\ns_add_u32 s70, s70, {MP}")
            if low:
                a(f"s_mul_i32 s72, s46, 4608\ns_add_u32 s72, s39, s72\ns_add_u32 s72, s72, {ML}")
            a(f"s_waitcnt vmcnt({younger + 18})")
            self.silu_to_lds(10, 13, XR)
            for s in range(0, 18, 2):
                a(f"ds_read2_b32 v[{XR+s}:{XR+s+1}], v14 offset0:{4*s} offset1:{4*s+4}")
            a("v_lshlrev_b32 v13, 5, v1\nv_lshl_add_u32 v13, v2, 4, v13")
            a("s_waitcnt lgkmcnt(0)")
            gemv18(younger)
            self.fold2(D, A0)
            if low:
                for r in range(4):
                    a(f"v_and_b32 v{A1+r}, 0xffffff00, v{D+r}")
                for r in range(4):
                    a(f"v_sub_f32 v{A1+r}, v{D+r}, v{A1+r}")
            self.tag4(D, vT)
            a("s_mov_b64 exec, s[78:79]")
            a(f"buffer_store_dwordx4 v[{D}:{D+3}], v13, s[{SW}:{SW+3}], s70 offen sc1")
            if low:
                self.tag4(A1, vT)
                a(f"buffer_store_dwordx4 v[{A1}:{A1+3}], v13, s[{SW}:{SW+3}], s72 offen sc1")
            a("s_mov_b64 exec, -1")

        def cold_tiles():
            a.label("L_tile_a")
            a("v_lshrrev_b32 v3, 3, v1\nv_lshl_add_u32 v3, v2, 1, v3\nv_and_b32 v4, 7, v1\nv_lshlrev_b32 v4, 4, v4")
            a("s_mov_b32 s78, 0x00ff00ff\ns_mov_b32 s79, 0")
            a(f"s_mul_i32 s71, s46, 384\ns_add_u32 s71, s71, {A_XS}")
            a(f"s_mul_i32 s38, s{S_X}, 18\ns_add_u32 s45, s45, s38\ns_sub_u32 s45, s45, 2")
            a("s_and_b32 s46, s45, 3\ns_lshr_b32 s45, s45, 2\ns_add_u32 s45, s45, 18")
            a("s_waitcnt lgkmcnt(0)")
            self.srd(SA, P_WM, 576 * 6912)
            self.srd(SC, P_C, 1152)
            a("s_barrier")
            self.ws_setup()
            self.tag_setup(vT)
            self.sel_setup(SEL, 13, 14, 15)
            self.lds_wait(A_GO, 1, 11, 14, 4, "L_go1")
            tile_loads(self.opt.get("dt", 18))
            tile_gemv(0, False, "s71")
            self.in_w = False
            self.stamp(9)
            self.in_w = True
            a(f"s_mov_b32 s44, 1\ns_sub_u32 s45, s{S_U}, 9\ns_sub_u32 s46, s{S_WAVE}, 4\ns_branch L_mlpw_noinit")
        self.cold.append(cold_tiles)

        def common_setup():
            self.tag_setup(vT)
            self.sel_setup(SEL, 13, 14, 15)
            self.tagbyte(TB, 2, vT)
            a(f"v_lshlrev_b32 v{VCOL}, 2, v8")

        def wo_loads(dep):
            a(f"v_mul_u32_u24 v{VWO}, 1152, v2\nv_bfe_u32 v6, v0, 3, 1\nv_mul_u32_u24 v6, {32*1152}, v6\nv_and_b32 v7, 7, v1")
            a(f"v_lshl_add_u32 v6, v7, 4, v6\nv_add_u32 v{VWO}, v{VWO}, v6")
            a(f"s_lshl_b32 s73, s{S_X}, 3\ns_add_u32 s73, s73, s{S_WAVE}\ns_mul_i32 s73, s73, {64*1152}\ns_lshl_b32 s39, s{S_U}, 7\ns_add_u32 s73, s73, s39")
            self.srd(12, P_WO, 4096 * 1152)
            for s in range(8):
                r = WO + 4 * s
                if s >= dep:
                    a(f"s_waitcnt vmcnt({dep-1})")
                a(f"buffer_load_dwordx4 v[{r}:{r+3}], v{VWO}, s[12:15], s73 offen nt")
                if s < 7:
                    a(f"s_add_u32 s73, s73, {4 * 1152}")

        a.label("L_w")
        self.in_w = True
        a("v_lshl_add_u32 v8, v1, 2, v2")
        a("s_mov_b32 s78, 0x00ff00ff\ns_mov_b32 s79, 0")
        a(f"s_cmp_ge_u32 s{S_WAVE}, 4\ns_cbranch_scc1 L_wo")
        a(f"s_mul_i32 s69, s{S_U}, {72*8192}\ns_lshl_b32 s70, s{S_X}, 10\ns_add_u32 s69, s69, s70\ns_lshl_b32 s70, s{S_WAVE}, 8\ns_add_u32 s69, s69, s70")
        a("v_lshlrev_b32 v5, 13, v2\nv_lshl_add_u32 v5, v1, 4, v5")
        a("s_waitcnt lgkmcnt(0)")
        self.fstamp(5)
        self.srd(SB, P_WQ, 576 * 8192)
        self.ws_setup()
        a("s_barrier")
        a(f"s_cmp_lt_u32 s{S_U}, 8\ns_cbranch_scc0 L_wq_none")
        DQ = self.opt.get("dq", 5)
        for s in range(18):
            r = MB + 4 * s
            if s >= DQ:
                a(f"s_waitcnt vmcnt({DQ-1})")
            a(f"buffer_load_dwordx4 v[{r}:{r+3}], v5, s[{SB}:{SB+3}], s69 offen nt")
            if s < 17:
                a(f"s_add_u32 s69, s69, {4*8192}")
            if s == self.opt.get("gow", 10):
                a(f"v_mov_b32 v6, 1\nv_mov_b32 v7, {W_GO}\nds_write_b32 v7, v6")
        self.stamp(1)
        common_setup()
        a(f"s_lshl_b32 s69, s{S_X}, 3\ns_add_u32 s69, s69, s{S_U}\ns_lshl_b32 s69, s69, 12\ns_lshl_b32 s38, s{S_WAVE}, 9\ns_add_u32 s69, s69, s38\ns_add_u32 s69, s69, {QP}")
        a("v_lshrrev_b32 v14, 1, v2\nv_lshlrev_b32 v14, 11, v14\nv_lshl_add_u32 v14, v1, 5, v14\nv_and_b32 v15, 1, v2\nv_lshl_add_u32 v14, v15, 4, v14")
        a(f"v_lshlrev_b32 v13, 2, v2\nv_add_u32 v13, {W_HS}, v13")
        a("s_mov_b32 s76, 0\ns_mov_b32 s77, -1\ns_setprio 2")
        self.lds_wait(W_HF, 1, 9, 10, 1, "L_hf")
        for s in range(0, 18, 2):
            a(f"ds_read2_b32 v[{XR+s}:{XR+s+1}], v13 offset0:{4*s} offset1:{4*s+4}")
        a(f"ds_read_b32 v9, v9 offset:{W_XF-W_HF}")
        a("s_waitcnt lgkmcnt(0)\nv_readfirstlane_b32 s75, v9")
        self.fstamp(9)
        gemv18(0)
        for r in range(4):
            a(f"v_and_b32 v{A1+r}, 0xffffff00, v{D+r}")
        for r in range(4):
            a(f"v_cndmask_b32 v{A1+r}, 0, v{A1+r}, s[76:77]")
        for r in range(4):
            a(f"v_sub_f32 v{D+r}, v{D+r}, v{A1+r}")
        self.tag4(D, vT)
        if self.fast:
            a("s_cmp_lg_u32 s75, 0\ns_cbranch_scc0 L_w_qslow")
            a(f"buffer_store_dwordx4 v[{D}:{D+3}], v14, s[{SW}:{SW+3}], s69 offen")
            a.label("L_w_qst")

            def cold_qs():
                a.label("L_w_qslow")
                a(f"buffer_store_dwordx4 v[{D}:{D+3}], v14, s[{SW}:{SW+3}], s69 offen sc1\ns_branch L_w_qst")
            self.cold.append(cold_qs)
        else:
            a(f"buffer_store_dwordx4 v[{D}:{D+3}], v14, s[{SW}:{SW+3}], s69 offen sc1")
        self.fstamp(8)
        a(f"v_mov_b32 v9, {W_QS}\nv_mov_b32 v10, 1\ns_mov_b64 exec, 1\nds_add_u32 v9, v10\ns_mov_b64 exec, -1")
        a("s_setprio 0\ns_branch L_w_wo")

        def cold_noq():
            a.label("L_wq_none")
            common_setup()
            if not self.opt.get('nopf'):
                a(f"s_cmp_eq_u32 s{S_WAVE}, 0\ns_cbranch_scc0 L_wq_none2")
                self.code_prefetch(MB, 13, 3)
                a.label("L_wq_none2")
            a(f"s_lshl_b32 s70, s{S_X}, 15\ns_lshl_b32 s38, s{S_WAVE}, 9\ns_add_u32 s70, s70, s38\ns_add_u32 s70, s70, {QP}\ns_add_u32 s71, s70, 16384")
            a("v_lshlrev_b32 v12, 12, v2\nv_lshl_add_u32 v12, v1, 4, v12")
            a(f"s_lshl_b32 s47, s{S_X}, 11\ns_add_u32 s47, s47, s38\ns_add_u32 s47, s47, {QB}")
            R = 24
            ql = [f"buffer_load_dwordx4 v[{R+16*b+4*k}:{R+16*b+4*k+3}], v12, s[{SW}:{SW+3}], s{70 + (k & 1)} offen offset:{2048*(k >> 1) + 256*b} sc1"
                  for b in range(2) for k in range(4)]
            self.lds_wait(W_QS, 1, 9, 10, 4, "L_qsr")
            for t in ql:
                a(t)
            self.lds_wait(W_GO, 1, 9, 10, 8, "L_gor")
            a(f"v_mov_b32 v9, {W_XF}\nds_read_b32 v9, v9")
            a("s_waitcnt lgkmcnt(0)\nv_readfirstlane_b32 s75, v9\ns_setprio 3")
            self.poll(ql, [R + 4 * k for k in range(8)], [], None, 15, sleep=self.opt.get("rsleep", 1))
            for B in (R, R + 16):
                for r in (0, 2, 8, 10):
                    a(f"v_pk_add_f32 v[{B+r}:{B+r+1}], v[{B+r}:{B+r+1}], v[{B+4+r}:{B+5+r}]")
            for B in (R, R + 16):
                for r in (0, 2):
                    a(f"v_pk_add_f32 v[{B+r}:{B+r+1}], v[{B+r}:{B+r+1}], v[{B+8+r}:{B+9+r}]")
            self.rscatter2(R, R + 16)
            self.rnd2(R, R + 16, 15)
            a(f"v_or3_b32 v{R}, v{R}, v{TB}, s75\nv_or3_b32 v{R+16}, v{R+16}, v{TB}, s75")
            a(f"buffer_store_dword v{R}, v{VCOL}, s[{SW}:{SW+3}], s47 offen\nbuffer_store_dword v{R+16}, v{VCOL}, s[{SW}:{SW+3}], s47 offen offset:256")
            self.stamp(4)
            if self.opt.get("front"):
                a(f"s_mov_b32 s{STB(6)}, s{S_CNT}")
            a(f"v_mov_b32 v9, {W_HF}\nv_mov_b32 v10, 1\ns_mov_b64 exec, 1\nds_add_u32 v9, v10\ns_mov_b64 exec, -1")
            self.lds_wait(W_HF, 4, 11, 14, 1, "L_hf8r")
            wo_loads(8)
            a("s_waitcnt vmcnt(0)")
            a(f"buffer_store_dword v{R}, v{VCOL}, s[{SW}:{SW+3}], s47 offen sc1\nbuffer_store_dword v{R+16}, v{VCOL}, s[{SW}:{SW+3}], s47 offen offset:256 sc1")
            a("s_branch L_w_wod")
        self.cold.append(cold_noq)

        a.label("L_wo")
        a("v_lshrrev_b32 v3, 3, v1\nv_lshl_add_u32 v3, v2, 1, v3\nv_and_b32 v4, 7, v1\nv_lshlrev_b32 v4, 4, v4")
        a(f"s_mul_i32 s45, s{S_X}, 9\ns_add_u32 s45, s45, s{S_U}\ns_and_b32 s46, s45, 3\ns_lshr_b32 s45, s45, 2")
        a("v_mov_b32 v6, 0\nv_mov_b32 v10, 0\nv_mov_b32 v11, 0\nv_mov_b32 v12, 0\nv_mov_b32 v13, 0")
        a(f"s_cmp_eq_u32 s{S_WAVE}, 7\ns_cbranch_scc0 L_wo_noinit\nds_write_b128 v6, v[10:13] offset:{W_HF}")
        a.label("L_wo_noinit")
        a("s_waitcnt lgkmcnt(0)")
        self.srd(SA, P_WM, 576 * 6912)
        a(f"s_cmp_eq_u32 s{S_WAVE}, 4\ns_cbranch_scc0 L_w_nom")
        self.srd(SC, P_C, 1152)
        tile_loads()
        a.label("L_w_nom")
        a(f"s_cmp_eq_u32 s{S_WAVE}, 5\ns_cbranch_scc0 L_w_nox")
        self.srd(SC, P_X, 1152)
        a("v_lshlrev_b32 v6, 4, v0\nv_lshlrev_b32 v7, 2, v0")
        a(f"buffer_load_dwordx4 v[{XA}:{XA+3}], v6, s[{SC}:{SC+3}], 0 offen")
        a(f"buffer_load_dword v{XB}, v7, s[{SC}:{SC+3}], 0 offen offset:1024")
        a("v_and_b32 v9, 1, v1\nv_lshl_add_u32 v9, v9, 2, v2\nv_add_u32 v9, 64, v9")
        a(f"s_mul_i32 s38, s{S_U}, 144\nv_lshlrev_b32 v6, 1, v8\nv_lshlrev_b32 v7, 1, v9")
        a(f"buffer_load_ushort v{XO}, v6, s[{SC}:{SC+3}], s38 offen\nbuffer_load_ushort v{XO+1}, v7, s[{SC}:{SC+3}], s38 offen")
        a.label("L_w_nox")
        self.ws_setup()
        a("s_barrier")
        common_setup()
        a(f"s_cmp_eq_u32 s{S_WAVE}, 5\ns_cbranch_scc1 L_w_ln")
        a(f"s_cmp_eq_u32 s{S_WAVE}, 4\ns_cbranch_scc0 L_w_67")
        a("s_setprio 3\ns_getreg_b32 s38, hwreg(HW_REG_XCC_ID, 0, 4)\ns_lshl_b32 s38, s38, 8")
        a(f"v_mov_b32 v{HG}, s38\nv_mov_b32 v{HG+1}, 0\nv_mov_b32 v{HG+2}, 0\nv_mov_b32 v{HG+3}, 0")
        self.tag4(HG, vT)
        a(f"s_lshl_b32 s38, s{S_X}, 4\ns_add_u32 s38, s38, s{S_U}\ns_lshl_b32 s38, s38, 7\ns_add_u32 s38, s38, {XI}")
        a("v_lshlrev_b32 v13, 4, v0\ns_mov_b64 exec, 0xff")
        a(f"buffer_store_dwordx4 v[{HG}:{HG+3}], v13, s[{SW}:{SW+3}], s38 offen sc1")
        a("s_mov_b64 exec, -1")
        tile_gemv(1, True, "0")
        self.stamp(2)
        a(f"s_setprio 0\ns_cmp_lt_u32 s{S_U}, 8\ns_cbranch_scc0 L_w_m8")
        a.label("L_w_wo")
        self.lds_wait(W_QS, self.opt.get("qs", 4), 11, 14, 2, "L_qs")
        a.label("L_w_wo2")
        wo_loads(self.opt.get("dw", 8))
        a.label("L_w_wod")

        def cold_front():
            a.label("L_w_m8")
            a(f"v_mov_b32 v9, {W_QS}\nv_mov_b32 v10, 1\nds_write_b32 v9, v10\ns_branch L_w_867")
            a.label("L_w_67")
            a(f"s_cmp_lt_u32 s{S_U}, 8\ns_cbranch_scc0 L_w_867")
            a(f"s_cmp_eq_u32 s{S_WAVE}, 6\ns_cbranch_scc0 L_w_wo")
            self.lds_wait(W_GO, 1, 11, 14, 4, "L_gow6")
            a(f"v_min_u32 v13, 8, v0\nv_lshlrev_b32 v13, 7, v13\ns_lshl_b32 s74, s{S_X}, 11\ns_add_u32 s74, s74, {XI}")
            self.xi_check(HG, 13, 74, 75, 14)
            a(f"v_mov_b32 v13, 0\nv_mov_b32 v14, s75\nds_write_b32 v13, v14 offset:{W_XF}")
            a("s_branch L_w_wo")
            a.label("L_w_867")
            a(f"s_cmp_eq_u32 s{S_WAVE}, 6\ns_cbranch_scc0 L_w_8wo")
            self.lds_wait(W_QS, 1, 11, 14, 2, "L_qs8")
            a(f"s_sleep {self.opt.get('xdel', 24)}")
            a(f"v_min_u32 v13, 8, v0\nv_lshlrev_b32 v13, 7, v13\ns_lshl_b32 s74, s{S_X}, 11\ns_add_u32 s74, s74, {XI}")
            self.xi_check(HG, 13, 74, 75, 14)
            a(f"v_mov_b32 v13, 0\nv_mov_b32 v14, s75\nds_write_b32 v13, v14 offset:{W_XF}\nv_mov_b32 v14, 1\nds_write_b32 v13, v14 offset:{W_GO}")
            a.label("L_w_8wo")
            self.lds_wait(W_HF, 4, 11, 14, 4, "L_hf8")
            a("s_branch L_w_wo2")
            a.label("L_w_ln")
            a(f"s_cmp_lt_u32 s{S_U}, 8\ns_cbranch_scc0 L_w_867")
            a("s_setprio 3\ns_waitcnt vmcnt(0)")
            U = 16
            for k in range(5):
                src = XA + k if k < 4 else XB
                a(f"v_lshlrev_b32 v{U+2*k}, 16, v{src}\nv_and_b32 v{U+2*k+1}, 0xffff0000, v{src}")
            a(f"v_add_f32 v10, v{U}, v{U+1}\nv_mul_f32 v11, v{U}, v{U}\nv_fmac_f32 v11, v{U+1}, v{U+1}")
            for k in range(2, 10):
                a(f"v_add_f32 v10, v10, v{U+k}\nv_fmac_f32 v11, v{U+k}, v{U+k}")
            self.row_all("v_add_f32", [10, 11])
            self.xrow_all("v_add_f32", [10, 11], [12, 13])
            a(f"v_mul_f32 v10, {hx(f2u(1.0/576))}, v10\nv_mul_f32 v11, {hx(f2u(1.0/576))}, v11\nv_fma_f32 v11, -v10, v10, v11")
            self.rnd2(10, 11, 12)
            a(f"v_add_f32 v11, {hx(f2u(1e-5))}, v11")
            self.rnd1(11)
            a("v_sqrt_f32 v11, v11")
            self.rnd1(11)
            a("v_rcp_f32 v11, v11")
            a(f"v_lshlrev_b32 v{XO}, 16, v{XO}\nv_lshlrev_b32 v{XO+1}, 16, v{XO+1}")
            a(f"v_sub_f32 v{XO}, v{XO}, v10\nv_sub_f32 v{XO+1}, v{XO+1}, v10")
            self.rnd2(XO, XO + 1, 12)
            a(f"v_mul_f32 v{XO}, v{XO}, v11\nv_mul_f32 v{XO+1}, v{XO+1}, v11")
            self.rnd2(XO, XO + 1, 12)
            a(f"s_mul_i32 s38, s{S_U}, 288\ns_add_u32 s70, s38, {MP}\ns_add_u32 s71, s38, {ML}")
            a(f"v_mul_u32_u24 v12, {MPS}, v2\nv_lshl_add_u32 v12, v1, 4, v12\nv_mul_u32_u24 v13, 4608, v2\nv_lshl_add_u32 v13, v1, 4, v13")
            a("v_and_b32 v14, 1, v1\nv_lshlrev_b32 v14, 4, v14\nv_bfe_u32 v15, v1, 1, 1\nv_mul_u32_u24 v15, 2304, v15\nv_add3_u32 v14, v14, v15, 64")
            a(f"v_add_u32 v14, 192, v14\nv_mul_u32_u24 v15, {MPS}, v2\nv_mul_u32_u24 v10, 4608, v2\nv_add_u32 v10, {ML-MP}, v10")
            a("v_and_b32 v11, 4, v1\nv_cmp_ne_u32 vcc, 0, v11\nv_cndmask_b32 v15, v15, v10, vcc\nv_add_u32 v14, v14, v15")
            a(f"v_add_u32 v10, {W_HS}, v{VCOL}")
            if self.opt.get("hgo", 1):
                self.lds_wait(W_GO, 1, 11, 9, 2, "L_gow5")
            a(f"v_mov_b32 v11, {W_HF}\nv_mov_b32 v9, 1")
            self.fstamp(8)
            H2 = 16

            def hloads(R):
                a(f"buffer_load_dwordx4 v[{R}:{R+3}], v12, s[{SW}:{SW+3}], s70 offen sc1")
                a(f"buffer_load_dwordx4 v[{R+4}:{R+7}], v12, s[{SW}:{SW+3}], s70 offen offset:2304 sc1")
                a(f"buffer_load_dwordx4 v[{R+8}:{R+11}], v13, s[{SW}:{SW+3}], s71 offen sc1")
                a(f"buffer_load_dwordx4 v[{R+12}:{R+15}], v13, s[{SW}:{SW+3}], s71 offen offset:2304 sc1")
                a(f"buffer_load_dwordx4 v[{R+16}:{R+19}], v14, s[{SW}:{SW+3}], s70 offen sc1")
            hloads(HG)
            a(f"s_sleep {self.opt.get('hgap', 8)}")
            hloads(H2)
            a(f"s_mov_b32 s{S_CNT}, 0")
            a.label("L_h_loop")
            self.clean([HG + 4 * k for k in range(5)], [], None, 15, waits=[9, 8, 7, 6, 5])
            a("s_cbranch_vccz L_h_ok")
            hloads(HG)
            self.clean([H2 + 4 * k for k in range(5)], [], None, 15, waits=[9, 8, 7, 6, 5])
            a("s_cbranch_vccz L_h_ok2")
            hloads(H2)
            a(f"s_add_u32 s{S_CNT}, s{S_CNT}, 1\ns_cmp_lt_u32 s{S_CNT}, {SPIN_MAX}\ns_cbranch_scc1 L_h_loop")
            for lab, R in (("L_h_ok2", H2), ("L_h_ok", HG)):
                a.label(lab)
                self.stamp(3)
                if self.opt.get("front"):
                    a(f"s_mov_b32 s{STB(6)}, s{S_CNT}")
                for r in range(4):
                    self.dpp("v_add_f32", R + 16 + r, R + 16 + r, R + 16 + r, "row_ror:12")
                for r in range(0, 8, 2):
                    a(f"v_pk_add_f32 v[{R+r}:{R+r+1}], v[{R+r}:{R+r+1}], v[{R+8+r}:{R+9+r}]")
                for k in (16, 0, 4):
                    self.rscatter(R + k)
                sA, cA, sB, cB = R, R + 4, R + 16, R + 17
                self.dpp("v_mov_b32", cB, sB, None, "row_ror:14")
                self.rnd2(cA, cB, 14)
                self.rnd2(sA, sB, 15)
                a(f"v_add_f32 v{cA}, 1.0, v{cA}\nv_add_f32 v{cB}, 1.0, v{cB}")
                self.rnd2(cA, cB, 14)
                a(f"v_mul_f32 v{cA}, v{cA}, v{XO}\nv_mul_f32 v{cB}, v{cB}, v{XO+1}")
                self.rnd2(cA, cB, 14)
                a(f"v_add_f32 v{cA}, v{cA}, v{sA}\nv_add_f32 v{cB}, v{cB}, v{sB}")
                a(f"v_cvt_pk_bf16_f32 v{cA}, v{cA}, v{cA}\nv_cvt_pk_bf16_f32 v{cB}, v{cB}, v{cB}")
                a(f"ds_write_b32 v10, v{cA}\nds_write_b32 v10, v{cB} offset:256\nds_write_b32 v11, v9")
                if lab == "L_h_ok2":
                    a("s_branch L_h_done")
            a.label("L_h_done")
            a("s_setprio 0\ns_branch L_w_wo")
        self.cold.append(cold_front)

        a(f"s_lshr_b32 s38, s{S_WAVE}, 2\ns_lshl_b32 s39, s{S_X}, 1\ns_add_u32 s38, s38, s39\ns_mul_i32 s38, s38, {12*OPSLOT}")
        a(f"s_add_u32 s38, s38, {OP}\ns_and_b32 s39, s{S_WAVE}, 3\ns_lshl_b32 s70, s39, 8\ns_add_u32 s70, s70, s38")
        a("s_lshr_b32 s39, s39, 1\ns_lshl_b32 s39, s39, 6\ns_add_u32 s71, s38, s39\ns_add_u32 s71, s71, 1024")
        a(f"s_add_u32 s72, s70, {4*OPSLOT}\ns_add_u32 s73, s70, {8*OPSLOT}")
        a(f"v_mul_u32_u24 v10, {OPSLOT}, v2\nv_min_u32 v11, 2, v1\nv_mul_u32_u24 v11, {4*OPSLOT}, v11\nv_add_u32 v11, v11, v10\nv_lshl_add_u32 v10, v1, 4, v10")
        a(f"s_lshl_b32 s38, s{S_WAVE}, 8\ns_add_u32 s38, s38, {W_RED2}")
        a(f"v_lshlrev_b32 v{VRW}, 5, v1\nv_lshl_add_u32 v{VRW}, v2, 4, v{VRW}\nv_add_u32 v{VRW}, s38, v{VRW}")
        a(f"v_lshlrev_b32 v{VRR}, 4, v0\nv_add_u32 v{VRR}, {W_RED2}, v{VRR}")
        a(f"s_mul_i32 s69, s{S_X}, 2304\ns_lshl_b32 s39, s{S_U}, 8\ns_add_u32 s69, s69, s39\ns_add_u32 s69, s69, {AP}")
        a("s_mov_b32 s76, 0x00070007\ns_mov_b32 s77, 0x00070007\ns_mov_b32 s74, 0xffffff00")
        self.stamp(5)
        oloads = [f"buffer_load_dwordx4 v[{OG+4*t}:{OG+4*t+3}], v10, s[{SW}:{SW+3}], s{(70, 72, 73)[t]} offen sc1" for t in range(3)]
        for t in oloads:
            a(t)
        self.poll([f"buffer_load_dwordx4 v[{ST}:{ST+3}], v11, s[{SW}:{SW+3}], s71 offen sc1"], [ST], [], None, 14, sleep=2)
        quad = ("quad_perm:[1,0,3,2]", "quad_perm:[2,3,0,1]")
        a(f"v_mov_b32 v14, v{ST}")
        self.row_all("v_max_f32", [14], quad)
        self.xrow_all("v_max_f32", [14], [15])
        a(f"v_sub_f32 v{ST}, v{ST}, v14\nv_mul_f32 v{ST}, {hx(f2u(LOG2E))}, v{ST}\nv_exp_f32 v{ST}, v{ST}")
        a(f"v_cndmask_b32 v{ST}, 0, v{ST}, s[76:77]\nv_mul_f32 v{ST+1}, v{ST}, v{ST+1}")
        self.row_all("v_add_f32", [ST + 1], quad)
        self.xrow_all("v_add_f32", [ST + 1], [15])
        a(f"v_rcp_f32 v{ST+1}, v{ST+1}\nv_mul_f32 v{ST}, v{ST}, v{ST+1}")
        for t in range(3):
            self.dpp("v_mov_b32", ST + 1 + t, ST, None, f"row_newbcast:{t}")
        self.poll(oloads, [OG + 4 * k for k in range(3)], [], None, 14)
        self.stamp(6)
        for r in range(4):
            a(f"v_mul_f32 v{OG+r}, v{ST+1}, v{OG+r}")
        for t in (1, 2):
            for r in range(4):
                a(f"v_fmac_f32 v{OG+r}, v{ST+1+t}, v{OG+4*t+r}")
        self.rscatter(OG)
        self.dpp("v_mov_b32", 15, OG, None, "row_ror:8")
        a(f"v_cvt_pk_bf16_f32 v14, v{OG}, v15")
        XS_ = (16, 17)
        self.dpp("v_mov_b32", 16, 14, None, "row_newbcast:0")
        self.dpp("v_mov_b32", 17, 14, None, "row_newbcast:1")
        self.diag(A0, 16, SEL)
        for s in range(8):
            if s + 1 < 8:
                self.diag(AS_[(s + 1) & 1], XS_[(s + 1) & 1], SEL)
            self.mfma(D, AS_[s & 1], WO + 4 * s, s == 0)
            if s + 2 < 8:
                self.dpp("v_mov_b32", XS_[s & 1], 14, None, f"row_newbcast:{s+2}")
        self.fold2(D, A0)
        a("s_mov_b64 exec, s[78:79]")
        a(f"ds_write_b128 v{VRW}, v[{D}:{D+3}]")
        a("s_mov_b64 exec, -1\ns_waitcnt lgkmcnt(0)\ns_barrier")
        a(f"s_cmp_eq_u32 s{S_WAVE}, 7\ns_cbranch_scc0 L_w_fin")
        a(f"ds_read_b128 v[16:19], v{VRR}\nds_read_b128 v[20:23], v{VRR} offset:1024\ns_waitcnt lgkmcnt(0)")
        a("v_pk_add_f32 v[16:17], v[16:17], v[20:21]\nv_pk_add_f32 v[18:19], v[18:19], v[22:23]")
        self.rscatter(16)
        a(f"v_and_or_b32 v16, v16, s74, v{TB}")
        a(f"buffer_store_dword v16, v{VCOL}, s[{SW}:{SW+3}], s69 offen sc1")
        self.stamp(7)
        a.label("L_w_fin")
        a(f"s_cmp_ge_u32 s{S_WAVE}, 6\ns_cbranch_scc1 L_w_exit")
        a("v_and_b32 v12, 3, v0")
        self.tagbyte(13, 12, vT)
        a(f"s_lshl_b32 s70, s{S_U}, 8\ns_lshl_b32 s39, s{S_X}, 5\ns_add_u32 s70, s70, s39")
        a("v_and_b32 v10, 7, v0\nv_lshlrev_b32 v10, 2, v10\nv_lshrrev_b32 v11, 3, v0\nv_mul_u32_u24 v11, 2304, v11\nv_add_u32 v11, v11, v10")
        self.srd(SC, P_OUT, 1152)
        a("s_lshr_b32 s71, s70, 1\nv_lshrrev_b32 v12, 1, v10")
        a(f"s_cmp_eq_u32 s{S_WAVE}, 0\ns_cbranch_scc0 L_w_fin3")
        self.srd(SA, P_X, 1152)
        self.srd(SB, P_B2, 1152)
        a(f"buffer_load_ushort v20, v12, s[{SA}:{SA+3}], s71 offen\nbuffer_load_ushort v21, v12, s[{SB}:{SB+3}], s71 offen")
        a(f"buffer_load_ushort v25, v12, s[{SC}:{SC+3}], s71 offen")
        a(f"v_bfe_u32 v26, v0, 3, 2\nv_mul_u32_u24 v26, {MPS}, v26\nv_lshrrev_b32 v27, 5, v0\nv_mul_u32_u24 v27, 6912, v27\nv_add3_u32 v26, v26, v27, v10")
        a(f"s_add_u32 s72, s70, {MP+4608}\ns_add_u32 s74, s70, {AP}")
        self.poll([f"buffer_load_dword v22, v26, s[{SW}:{SW+3}], s72 offen sc1",
                   f"buffer_load_dword v24, v11, s[{SW}:{SW+3}], s74 offen sc1"], [], [22, 24], 13, 27, sleep=1)
        self.dpp("v_add_f32", 22, 22, 22, "row_ror:8")
        self.dpp("v_add_f32", 24, 24, 24, "row_ror:8")
        a("v_mov_b32 v26, v22\nv_mov_b32 v27, v24\nv_permlane16_swap_b32 v26, v22\nv_permlane16_swap_b32 v27, v24")
        a("v_add_f32 v22, v22, v26\nv_add_f32 v24, v24, v27\nv_mov_b32 v27, v24\nv_permlane32_swap_b32 v22, v23\nv_permlane32_swap_b32 v27, v24")
        a("v_add_f32 v24, v24, v27\nv_lshlrev_b32 v20, 16, v20\nv_lshlrev_b32 v21, 16, v21")
        self.rnd2(22, 23, 26)
        self.rnd1(24)
        a("v_mul_f32 v24, v24, v22")
        self.rnd1(24)
        a("v_add_f32 v24, v24, v20")
        self.rnd1(24)
        a.label("L_w_fin3")
        a(f"s_mul_i32 s72, s{S_WAVE}, {24*2304}\ns_add_u32 s72, s72, s70\ns_add_u32 s72, s72, {FP}")
        a(f"s_add_u32 s73, s72, {8*2304}\ns_add_u32 s74, s72, {16*2304}")
        a(f"s_lshl_b32 s38, s{S_WAVE}, 5\ns_add_u32 s38, s38, {W_FIN}\nv_add_u32 v14, s38, v10\nv_add_u32 v15, {W_FIN}, v10")
        self.stamp(8)
        self.poll([f"buffer_load_dword v{16+k}, v11, s[{SW}:{SW+3}], s{72+k} offen sc1" for k in range(3)], [], [16, 17, 18], 13, 19)
        a("v_add_f32 v16, v16, v17\nv_add_f32 v16, v16, v18")
        self.dpp("v_add_f32", 16, 16, 16, "row_ror:8")
        self.xrow_all("v_add_f32", [16], [17])
        a("s_mov_b64 exec, 0xff\nds_write_b32 v14, v16\ns_waitcnt lgkmcnt(0)\ns_barrier")
        a(f"s_cmp_eq_u32 s{S_WAVE}, 0\ns_cbranch_scc0 L_w_exit")
        for k in range(3):
            a(f"ds_read2_b32 v[{26+2*k}:{27+2*k}], v15 offset0:{16*k} offset1:{16*k+8}")
        a("s_waitcnt lgkmcnt(0)")
        a("v_add_f32 v26, v26, v27\nv_add_f32 v28, v28, v29\nv_add_f32 v30, v30, v31\nv_add_f32 v26, v26, v28\nv_add_f32 v26, v26, v30")
        self.rnd1(26)
        a("v_add_f32 v26, v26, v21")
        self.rnd1(26)
        a("v_mul_f32 v26, v26, v23")
        self.rnd1(26)
        a("v_add_f32 v26, v26, v24\nv_cvt_pk_bf16_f32 v26, v26, v26")
        a(f"buffer_store_short v26, v12, s[{SC}:{SC+3}], s71 offen")
        a("s_cmp_eq_u32 s2, 0\ns_cbranch_scc0 L_w_exit")
        a(f"s_mov_b64 exec, 1\nv_mov_b32 v27, 0\nbuffer_store_dword v{vT}, v27, s[{SW}:{SW+3}], 0 offen offset:{EP}")
        if self.opt.get("pin"):
            a(f"s_add_u32 s100, s100, {self.opt['pin']}")
            a.label("L_pin")
            a("s_memrealtime s[98:99]\ns_waitcnt lgkmcnt(0)\ns_sub_u32 s98, s98, s100\ns_cmp_lt_i32 s98, 0\ns_cbranch_scc1 L_pin")
        a.label("L_w_exit")
        a("s_mov_b64 exec, -1")
        self.stamp(9)
        self.dump_stamps()
        a("s_endpgm")


HEAD = f"""; fused adaLN-conditioned decode block: one persistent launch, 256 workgroups (one per CU), hand-offs through d_ws
; @launch grid=(256,1,1) block=(512,1,1) lds={LDS_BYTES}
.amdgcn_target "amdgcn-amd-amdhsa--gfx950"
.text
.globl {NAME}_kernel
.p2align 8
.type {NAME}_kernel,@function
"""
TAIL = f""".section .rodata,"a"
.p2align 6
.amdhsa_kernel {NAME}_kernel
  .amdhsa_next_free_vgpr 256
  .amdhsa_next_free_sgpr 102
  .amdhsa_accum_offset 256
  .amdhsa_group_segment_fixed_size 0
  .amdhsa_kernarg_size 120
  .amdhsa_user_sgpr_count 2
  .amdhsa_user_sgpr_kernarg_segment_ptr 1
  .amdhsa_system_sgpr_workgroup_id_x 1
  .amdhsa_float_denorm_mode_32 3
.end_amdhsa_kernel
"""


def generate(stamps=False, fast=True, opt=None):
    g = G(stamps, fast, opt)
    body = g.build()
    opt = opt or {}
    L = []
    for ln in body.split("\n"):
        t = ln.strip()
        if t.startswith("buffer_load") and not t.endswith(" nt"):
            if t.endswith("sc1"):
                if opt.get("ntpoll"):
                    ln += " nt"
            elif opt.get("ntsmall"):
                ln += " nt"
        if t.startswith("global_load") and opt.get("ntsmall"):
            ln += " nt"
        if t.startswith("buffer_store") and t.endswith("sc1") and opt.get("ntstore"):
            ln += " nt"
        L.append(ln)
    return HEAD + "\n".join(L) + TAIL


if __name__ == "__main__":
    out = sys.argv[1]
    stamps = "stamps" in sys.argv[2:]
    fast = "nofast" not in sys.argv[2:]
    opt = {}
    for arg in sys.argv[2:]:
        if "=" in arg:
            k, v = arg.split("=")
            opt[k] = int(v) if v.lstrip("-").isdigit() else v
    open(out, "w").write(generate(stamps, fast, opt))
```

```python
import re

TRANS = ("v_exp_f32", "v_log_f32", "v_rcp_f32", "v_rsq_f32", "v_sqrt_f32", "v_sin_f32", "v_cos_f32")


def regs_of(tok):
    tok = tok.strip()
    tok = tok.lstrip("-")
    m = re.fullmatch(r"(?:abs\(|\|)?([vsa])(\d+)(?:\)|\|)?", tok)
    if m:
        return [(m.group(1), int(m.group(2)))]
    m = re.fullmatch(r"([vsa])\[(\d+):(\d+)\]", tok)
    if m:
        return [(m.group(1), r) for r in range(int(m.group(2)), int(m.group(3)) + 1)]
    if tok in ("vcc", "vcc_lo", "vcc_hi"):
        return [("s", "vcc")]
    if tok in ("exec", "exec_lo", "exec_hi"):
        return [("s", "exec")]
    if tok == "m0":
        return [("s", "m0")]
    return []


class Ins:
    def __init__(self, text):
        self.text = text
        t = text.split(";")[0].strip()
        self.op = t.split()[0]
        rest = t[len(self.op):].strip()
        ops, depth, cur = [], 0, ""
        for ch in rest:
            if ch == "[":
                depth += 1
            if ch == "]":
                depth -= 1
            if ch == "," and depth == 0:
                ops.append(cur.strip())
                cur = ""
            else:
                cur += ch
        if cur.strip():
            ops.append(cur.strip())
        mods = ""
        if ops:
            parts = ops[-1].split(None, 1)
            ops[-1] = parts[0]
            mods = parts[1] if len(parts) > 1 else ""
        self.ops, self.mods = ops, mods
        op = self.op
        self.is_mfma = op.startswith("v_mfma")
        self.is_valu = op.startswith("v_") and not self.is_mfma
        self.is_vmem = op.startswith(("buffer_", "global_"))
        self.is_ds = op.startswith("ds_")
        self.is_salu = op.startswith("s_")
        self.is_dpp = "_dpp" in op
        self.is_perml = op.startswith("v_permlane")
        self.is_trans = op.replace("_e32", "").replace("_e64", "") in TRANS
        self.is_lane = op.startswith(("v_readlane", "v_readfirstlane", "v_writelane"))
        R = [regs_of(o) for o in ops]
        w, r = [], []
        if self.is_mfma:
            w = R[0]
            r = R[1] + R[2] + R[3]
            self.ab = R[1] + R[2]
            self.c = R[3]
        elif self.is_valu:
            if self.is_perml:
                w = R[0] + R[1]
                r = R[0] + R[1]
            elif op.startswith("v_cmp"):
                w = R[0]
                r = sum(R[1:], [])
            else:
                w = R[0]
                r = sum(R[1:], [])
                if op.startswith(("v_fmac", "v_dot2c", "v_writelane")) or self.is_dpp:
                    r = r + R[0]
                if op.startswith(("v_add_co", "v_addc_co", "v_sub_co")):
                    w = R[0] + R[1]
                    r = sum(R[2:], [])
        elif self.is_vmem:
            if "_load" in op:
                if "lds" in mods.split():
                    r = sum(R, [])
                else:
                    w = R[0]
                    r = sum(R[1:], [])
            else:
                r = sum(R, [])
        elif self.is_ds:
            if op.startswith(("ds_read", "ds_bpermute", "ds_permute", "ds_swizzle")) or "_rtn" in op:
                w = R[0]
                r = sum(R[1:], [])
            else:
                r = sum(R, [])
        elif self.is_salu:
            if op.startswith(("s_cmp", "s_cbranch", "s_branch", "s_waitcnt", "s_nop", "s_barrier", "s_sleep",
                              "s_setprio", "s_endpgm", "s_bitcmp")):
                r = sum(R, [])
            else:
                w = R[0] if R else []
                r = sum(R[1:], [])
        self.w, self.r = set(w), set(r)
        self.dpp_src = set(R[1]) if self.is_dpp and len(R) > 1 else set()
        self.wide_store = self.is_vmem and "store" in op and op.endswith(("x3", "x4"))
        self.store_data = set()
        if self.wide_store:
            self.store_data = set(R[0]) if op.startswith("buffer_") else set(R[1])
        self.states = 1
        if op == "s_nop":
            self.states = int(ops[0], 0) + 1


def need(p, c):
    n = 0
    vw = {x for x in p.w if x[0] in "va"}
    sw = {x for x in p.w if x[0] == "s"}
    if p.is_valu:
        if c.is_mfma and vw & c.r:
            n = max(n, 2)
        if c.is_dpp and vw & c.dpp_src:
            n = max(n, 2)
        if c.is_perml and vw & c.r:
            n = max(n, 2)
        if c.is_lane and vw & c.r:
            n = max(n, 1)
        if p.is_trans and c.is_valu and vw & c.r:
            n = max(n, 1)
        if sw:
            if c.is_valu and (sw & c.r or (("s", "vcc") in sw and c.op.startswith("v_cndmask") and len(c.ops) == 4 and c.ops[3] == "vcc")):
                n = max(n, 4 if c.is_lane else 2)
            if c.is_vmem and sw & c.r:
                n = max(n, 5)
            if ("s", "exec") in sw and (c.is_dpp or c.is_mfma or c.is_lane or c.is_perml):
                n = max(n, 5)
    if p.is_mfma:
        passes = 8 if "32x32" in p.op else 4
        big = {4: 8, 8: 12}[passes]
        if c.is_mfma:
            if vw & set(c.ab):
                n = max(n, big)
            if vw & set(c.c) and set(c.c) != vw:
                n = max(n, big - 2)
            if vw & c.w and set(c.c) != vw:
                n = max(n, big)
        elif vw & (c.r | c.w):
            n = max(n, big)
        if c.is_valu and set(p.c) & c.w:
            n = max(n, {4: 3, 8: 7}[passes])
    if p.wide_store and (c.is_valu or c.is_mfma) and p.store_data & c.w:
        n = max(n, 2)
    if p.is_salu and ("s", "m0") in p.w and c.is_vmem and ("lds" in c.mods.split() or "_lds_" in c.op):
        n = max(n, 1)
    return n


class Asm:
    def __init__(self):
        self.secs = {"main": []}
        self.lines = self.secs["main"]
        self.hist = []
        self.nops = 0

    def raw(self, text):
        self.lines.append(text)

    def label(self, name):
        self.lines.append(name + ":")

    def __call__(self, text):
        for t in text.split("\n"):
            t = t.strip()
            if not t or t.startswith(";"):
                continue
            if t.endswith(":"):
                self.label(t[:-1])
                continue
            ins = Ins(t)
            dist, pad = 0, 0
            for p in reversed(self.hist):
                k = need(p, ins)
                if k > dist:
                    pad = max(pad, k - dist)
                dist += p.states
                if dist >= 20:
                    break
            if pad:
                nop = Ins(f"s_nop {pad - 1}")
                self.lines.append("    " + nop.text)
                self.hist.append(nop)
                self.nops += 1
            self.lines.append("    " + t)
            self.hist.append(ins)
            if ins.op in ("s_branch", "s_endpgm", "s_setpc_b64"):
                self.hist = []
            self.hist = self.hist[-24:]

    def fence(self):
        self("s_nop 7")

    def section(self, name):
        self.lines = self.secs.setdefault(name, [])
        self.hist = []

    def text(self, order=("main",)):
        assert set(order) == set(self.secs), (order, list(self.secs))
        return "\n".join(l for n in order for l in self.secs[n]) + "\n"
```

```python
import sys, struct, os
sys.path.insert(0, os.path.dirname(os.path.abspath(__file__)))
from asmlib import Asm

NAME = "adaLN_cond__sliding_block_cached__mixer_channel_mlp__decode"


def f2u(x):
    return struct.unpack("<I", struct.pack("<f", x))[0]


def hx(x):
    return "0x%08x" % (x & 0xffffffff)


LOG2E = 1.4426950408889634
EP, XI, MP, ML, QB, AP, OP, FP, QP, STAMP = 0, 933888, 4096, 59392, 77824, 94208, 112640, 333824, 665600, 1 << 20
APR = 1 << 21
EX = 950272
MPS = 3456 * 4
OPSLOT = 1152
A_FLAG, A_GO, A_MG, A_PUB, A_WD = 96, 104, 108, 112, 116
A_CNT, A_NEG, A_ST, A_QL, A_CMB, A_XS, A_F1P, A_U, A_AA, A_BB, A_STAT, A_ZERO = 0, 16, 32, 128, 2176, 6272, 7808, 11904, 14208, 16512, 18816, 19712
W_XS, W_HS, W_RED2, W_FIN, W_HF, W_XF, W_GO, W_QS = 0, 512, 1024, 3072, 3328, 3332, 3336, 3340
LDS_BYTES = 19712 + 1024
SPIN_MAX = 40000

P_X, P_K, P_V, P_WQ, P_WO, P_W1, P_B1, P_W2, P_B2, P_C, P_WM, P_OUT, P_WS = 8, 10, 12, 14, 16, 20, 22, 24, 26, 28, 30, 32, 36
S_WAVE, S_X, S_U, S_T, S_SELA = 40, 41, 42, 43, 44
SA, SB, SC, SW = 48, 52, 56, 60
S_TB = 92
S_BAD = 66
S_CNT = 68


def STB(k):
    return (80, 82, 84, 86, 88, 90, 96, 98, 100, 64)[k]


class G:
    def __init__(self, stamps=False, fast=True, opt=None):
        self.a = Asm()
        self.stamps = stamps
        self.fast = fast
        self.opt = opt or {}
        self.nlab = 0
        self.cold = []
        self.in_w = False

    def lab(self, base):
        self.nlab += 1
        return f"L_{base}_{self.nlab}"

    def srd(self, d, p, size, add=None):
        a = self.a
        if add is None:
            a(f"s_mov_b32 s{d}, s{p}\ns_mov_b32 s{d+1}, s{p+1}")
        else:
            a(f"s_add_u32 s{d}, s{p}, {add}\ns_addc_u32 s{d+1}, s{p+1}, 0")
        a(f"s_mov_b32 s{d+2}, {size}\ns_mov_b32 s{d+3}, 0x20000")

    def fstamp(self, k):
        if self.stamps and self.opt.get("front"):
            self.a(f"s_memrealtime s[{STB(k)}:{STB(k)+1}]")

    def stamp(self, k):
        if self.stamps and not (self.opt.get("front") and k >= 5 and self.in_w):
            self.a(f"s_memrealtime s[{STB(k)}:{STB(k)+1}]")

    def dump_stamps(self):
        if not self.stamps:
            return
        a = self.a
        a("s_waitcnt lgkmcnt(0)")
        a(f"s_lshl_b32 s38, s2, 3\ns_add_u32 s38, s38, s{S_WAVE}\ns_lshl_b32 s38, s38, 6\ns_add_u32 s38, s38, {STAMP}")
        a("s_mov_b64 exec, 1\nv_mov_b32 v2, 0")
        for k in range(10):
            a(f"v_mov_b32 v3, s{STB(k)}")
            a(f"buffer_store_dword v3, v2, s[{SW}:{SW+3}], s38 offen offset:{4*k}")
        a("s_getreg_b32 s39, hwreg(HW_REG_XCC_ID)\nv_mov_b32 v3, s39")
        a(f"buffer_store_dword v3, v2, s[{SW}:{SW+3}], s38 offen offset:40")
        a(f"v_mov_b32 v3, s76\nbuffer_store_dword v3, v2, s[{SW}:{SW+3}], s38 offen offset:44")

    def tag_setup(self, vT):
        a = self.a
        a("s_waitcnt lgkmcnt(0)")
        a(f"s_add_u32 s{S_T}, s{S_T}, 0x01010101")
        for k in range(4):
            a(f"s_mov_b32 s{4+k}, {hx(0x07060500 + k)}")
            a(f"s_bfe_u32 s{S_TB+k}, s{S_T}, {hex(0x80000 + 8 * k)}")
        a(f"v_mov_b32 v{vT}, s{S_T}")

    def tag4(self, d, vT):
        for k in range(4):
            self.a(f"v_perm_b32 v{d+k}, v{d+k}, v{vT}, s{4+k}")

    def tagbyte(self, vd, vsel, vT):
        a = self.a
        a(f"v_lshlrev_b32 v{vd}, 3, v{vsel}\nv_lshrrev_b32 v{vd}, v{vd}, v{vT}\nv_and_b32 v{vd}, 0xff, v{vd}")

    def clean(self, grans, words, vtb, acc, waits=None):
        a = self.a
        regs = []
        pend = []
        first = True

        def fold():
            nonlocal first
            while len(pend) >= (3 if first else 2):
                if first:
                    a(f"v_or3_b32 v{acc}, v{pend[0]}, v{pend[1]}, v{pend[2]}")
                    del pend[:3]
                    first = False
                else:
                    a(f"v_or3_b32 v{acc}, v{acc}, v{pend[0]}, v{pend[1]}")
                    del pend[:2]
        n = 0
        for d in grans:
            if waits:
                a(f"s_waitcnt vmcnt({waits[n]})")
            n += 1
            for k in range(4):
                a(f"v_xor_b32 v{d+k}, s{S_TB+k}, v{d+k}")
                pend.append(d + k)
            fold()
        for d in words:
            if waits:
                a(f"s_waitcnt vmcnt({waits[n]})")
            n += 1
            a(f"v_xor_b32 v{d}, v{vtb}, v{d}")
            pend.append(d)
            fold()
        if first:
            assert len(pend) == 2
            a(f"v_or_b32 v{acc}, v{pend[0]}, v{pend[1]}")
            pend = []
        for r in pend:
            a(f"v_or_b32 v{acc}, v{acc}, v{r}")
        a(f"v_and_b32 v{acc}, 0xff, v{acc}")
        a(f"v_cmp_ne_u32 vcc, 0, v{acc}")

    def sel_setup(self, sel, t0, t1, t2):
        a = self.a
        a(f"v_bfe_u32 v{t0}, v0, 3, 1")
        a(f"v_mul_u32_u24 v{t0}, 0x202, v{t0}\nv_add_u32 v{t0}, 0x100, v{t0}")
        a(f"v_and_b32 v{t1}, 1, v0\nv_lshlrev_b32 v{t1}, 4, v{t1}")
        a(f"v_lshlrev_b32 v{t0}, v{t1}, v{t0}")
        a(f"v_mov_b32 v{t2}, 0x0c0c0000\nv_lshrrev_b32 v{t1}, v{t1}, v{t2}\nv_or_b32 v{t0}, v{t0}, v{t1}")
        a(f"v_bfe_u32 v{t1}, v0, 1, 2\nv_mov_b32 v{t2}, 0x0c0c0c0c")
        for d in range(4):
            a(f"v_cmp_eq_u32 vcc, {d}, v{t1}\nv_cndmask_b32 v{sel+d}, v{t2}, v{t0}, vcc")

    def diag(self, A, x, sel):
        for d in range(4):
            self.a(f"v_perm_b32 v{A+d}, v{x}, v{x}, v{sel+d}")

    def mfma(self, D, A, B, first):
        c = "0" if first else f"v[{D}:{D+3}]"
        self.a(f"v_mfma_f32_16x16x32_bf16 v[{D}:{D+3}], v[{A}:{A+3}], v[{B}:{B+3}], {c}")

    def dpp(self, op, d, s0, s1, ctl, rm=0xf, bm=0xf):
        if s1 is None:
            self.a(f"{op}_dpp v{d}, v{s0} {ctl} row_mask:{hex(rm)} bank_mask:{hex(bm)}")
        else:
            self.a(f"{op}_dpp v{d}, v{s0}, v{s1} {ctl} row_mask:{hex(rm)} bank_mask:{hex(bm)}")

    def xrow_all(self, op, regs, tmps):
        a = self.a
        for sw in ("v_permlane16_swap_b32", "v_permlane32_swap_b32"):
            for r, t in zip(regs, tmps):
                a(f"v_mov_b32 v{t}, v{r}")
            for r, t in zip(regs, tmps):
                a(f"{sw} v{t}, v{r}")
            for r, t in zip(regs, tmps):
                a(f"{op} v{r}, v{r}, v{t}")

    def row_all(self, op, regs, steps=("quad_perm:[1,0,3,2]", "quad_perm:[2,3,0,1]", "row_half_mirror", "row_mirror")):
        for st in steps:
            for r in regs:
                self.dpp(op, r, r, r, st)

    def rscatter(self, c):
        a = self.a
        a(f"v_permlane32_swap_b32 v{c}, v{c+2}\nv_permlane32_swap_b32 v{c+1}, v{c+3}")
        a(f"v_add_f32 v{c}, v{c}, v{c+2}\nv_add_f32 v{c+1}, v{c+1}, v{c+3}")
        a(f"v_permlane16_swap_b32 v{c}, v{c+1}\nv_add_f32 v{c}, v{c}, v{c+1}")

    def rscatter2(self, g0, g1):
        a = self.a
        for c in (g0, g1):
            a(f"v_permlane32_swap_b32 v{c}, v{c+2}\nv_permlane32_swap_b32 v{c+1}, v{c+3}")
        for c in (g0, g1):
            a(f"v_add_f32 v{c}, v{c}, v{c+2}\nv_add_f32 v{c+1}, v{c+1}, v{c+3}")
        for c in (g0, g1):
            a(f"v_permlane16_swap_b32 v{c}, v{c+1}")
        for c in (g0, g1):
            a(f"v_add_f32 v{c}, v{c}, v{c+1}")

    def fold2(self, D, t):
        a = self.a
        for r in range(4):
            a(f"v_permlane32_swap_b32 v{D+r}, v{t+r}")
        for r in range(4):
            self.dpp("v_add_f32", D + r, t + r, D + r, "row_ror:8")

    def rnd2(self, x, y, t):
        a = self.a
        a(f"v_cvt_pk_bf16_f32 v{t}, v{x}, v{y}\nv_lshlrev_b32 v{x}, 16, v{t}\nv_and_b32 v{y}, 0xffff0000, v{t}")

    def rnd1(self, x):
        a = self.a
        a(f"v_cvt_pk_bf16_f32 v{x}, v{x}, v{x}\nv_and_b32 v{x}, 0xffff0000, v{x}")

    def silu_to_lds(self, c, vaddr, t):
        a = self.a
        for k in range(3):
            a(f"v_lshlrev_b32 v{c+k}, 16, v{c+k}")
        for k in range(3):
            a(f"v_mul_f32 v{t+k}, {hx(f2u(-LOG2E))}, v{c+k}")
        for k in range(3):
            a(f"v_exp_f32 v{t+k}, v{t+k}")
        for k in range(3):
            a(f"v_add_f32 v{t+k}, 1.0, v{t+k}")
        for k in range(3):
            a(f"v_rcp_f32 v{t+k}, v{t+k}")
        for k in range(3):
            a(f"v_mul_f32 v{c+k}, v{c+k}, v{t+k}")
        a(f"v_cvt_pk_bf16_f32 v{t}, v{c}, v{c+1}\nv_cvt_pk_bf16_f32 v{t+1}, v{c+2}, v{c+2}")
        a(f"ds_write_b16 v{vaddr}, v{t}\nds_write_b16_d16_hi v{vaddr}, v{t} offset:128\nds_write_b16 v{vaddr}, v{t+1} offset:256")

    def code_prefetch(self, vd, vt, n):
        a = self.a
        a("s_getpc_b64 s[38:39]")
        lab = self.lab("pc")
        a.label(lab)
        a(f"s_sub_u32 s38, s38, {lab}-{NAME}_kernel\ns_subb_u32 s39, s39, 0")
        a(f"v_lshlrev_b32 v{vt}, 7, v0")
        for k in range(n):
            if k + 1 == n:
                a(f"v_min_u32 v{vt}, L_end-{NAME}_kernel, v{vt}")
            a(f"global_load_dword v{vd+k}, v{vt}, s[38:39]")
            if k + 1 < n:
                a(f"v_add_u32 v{vt}, 8192, v{vt}")

    def build(self):
        a = self.a
        a.raw(f"{NAME}_kernel:")
        self.stamp(0)
        if self.opt.get("pin"):
            a("s_memrealtime s[100:101]")
        a("s_cmp_ge_u32 s2, 256\ns_cbranch_scc1 L_end")
        a("s_load_dwordx16 s[8:23], s[0:1], 0\ns_load_dwordx8 s[24:31], s[0:1], 64")
        a("s_load_dwordx4 s[32:35], s[0:1], 96\ns_load_dwordx2 s[36:37], s[0:1], 112")
        a(f"v_lshrrev_b32 v1, 6, v0\nv_and_b32 v0, 63, v0\nv_readfirstlane_b32 s{S_WAVE}, v1")
        a(f"s_and_b32 s{S_X}, s2, 7\ns_lshr_b32 s{S_U}, s2, 3")
        a("v_and_b32 v1, 15, v0\nv_lshrrev_b32 v2, 4, v0")
        a(f"s_cmp_lt_u32 s{S_U}, 9\ns_cbranch_scc0 L_a")
        a("v_lshl_add_u32 v8, v1, 2, v2")
        a("s_mov_b32 s78, 0x00ff00ff\ns_mov_b32 s79, 0")
        a(f"s_cmp_ge_u32 s{S_WAVE}, 4\ns_cbranch_scc0 L_wq")
        a.section("att0")
        a.label("L_a")
        a(f"s_cmp_ge_u32 s{S_WAVE}, 4\ns_cbranch_scc1 L_mlpw")
        self.att()
        self.mlpw()
        self.s4_and_mlp()
        self.wcu()
        a.section("cold")
        k = 0
        while k < len(self.cold):
            self.cold[k]()
            k += 1
        a.label("L_end")
        a("s_endpgm")
        if self.opt.get("lay") == 1:
            a.section("main")
            a("s_branch L_wo0")
            return a.text(("main", "att0", "wo0", "wq0", "att", "wq1", "wo1", "cold"))
        return a.text(("main", "wo0", "wq0", "att0", "att", "wq1", "wo1", "cold"))

    def ws_setup(self):
        a = self.a
        a(f"s_load_dword s{S_T}, s[{P_WS}:{P_WS+1}], {EP}")
        self.srd(SW, P_WS, 3 << 20)

    def const_addr(self, boff, va, vx):
        a = self.a
        a(f"v_mul_u32_u24 v{va}, {MPS}, v2\nv_lshl_add_u32 v{va}, v1, 4, v{va}\nv_add_u32 v{va}, s{boff}, v{va}")
        a(f"v_lshlrev_b32 v{vx}, 3, v1\nv_lshl_add_u32 v{vx}, v2, 1, v{vx}\ns_lshr_b32 s38, s{boff}, 1\nv_add_u32 v{vx}, s38, v{vx}")

    def const_loads(self, R, va, vx, pre=None):
        a = self.a
        a(f"s_mov_b32 s38, {MP+4608}\ns_mov_b32 s39, {MP+9216}")
        L = [f"buffer_load_dwordx4 v[{R}:{R+3}], v{va}, s[{SW}:{SW+3}], s38 offen sc1",
             f"buffer_load_dwordx4 v[{R+4}:{R+7}], v{va}, s[{SW}:{SW+3}], s38 offen offset:2304 sc1",
             f"buffer_load_dwordx4 v[{R+8}:{R+11}], v{va}, s[{SW}:{SW+3}], s39 offen sc1"]
        if vx is not None:
            L.append(f"buffer_load_ushort v{R+12}, v{vx}, s[{SC}:{SC+3}], 0 offen")
        for t in L:
            if pre:
                pre()
            a(t)

    def xi_check(self, R, va, soff, sdst, t):
        a = self.a
        if not self.fast:
            a(f"s_mov_b32 s{sdst}, 0")
            return
        a(f"buffer_load_dwordx4 v[{R}:{R+3}], v{va}, s[{SW}:{SW+3}], s{soff} offen sc1")
        a(f"s_getreg_b32 s{sdst}, hwreg(HW_REG_XCC_ID, 0, 4)\ns_lshl_b32 s{sdst}, s{sdst}, 8\ns_waitcnt vmcnt(0)")
        for k in range(4):
            a(f"v_xor_b32 v{R+k}, s{S_TB+k}, v{R+k}")
        a(f"v_xor_b32 v{R}, s{sdst}, v{R}\nv_or3_b32 v{t}, v{R+1}, v{R+2}, v{R+3}\nv_or_b32 v{t}, v{t}, v{R}")
        a(f"s_or_b32 s{sdst}, s{sdst}, 0x1000\nv_cmp_ne_u32 vcc, 0, v{t}\ns_cmp_eq_u64 vcc, 0\ns_cselect_b32 s{sdst}, s{sdst}, 0")

    def att(self):
        a = self.a
        KR, VR, Q1, Q2, QA, QM, D, O, SEL, PP, X0, A0, A1 = 8, 104, 200, 204, 208, 216, 224, 236, 240, 244, 247, 248, 252
        vT = 7
        DEP = self.opt.get("dep", 5)
        BUR = self.opt.get("bur", 8)
        DEP0, N0 = self.opt.get("dep0", 5), self.opt.get("n0", 10)
        a("s_setprio 2")
        a(f"s_sub_u32 s45, s{S_U}, 9\ns_lshl_b32 s46, s45, 2\ns_add_u32 s46, s46, s{S_WAVE}")
        a("s_sub_u32 s69, s46, 46\ns_cmp_ge_u32 s46, 46\ns_cselect_b32 s46, s69, s46\ns_cselect_b32 s47, 1, 0")
        a("s_cmp_eq_u32 s47, 0\ns_cselect_b32 s70, 8, 6\ns_cselect_b32 s71, 44, 34\ns_cselect_b32 s72, 1, -1")
        for dst, off in ((38, 0), (3, 1)):
            a(f"s_add_u32 s73, s46, {off}\ns_min_u32 s74, s73, s70\ns_max_u32 s75, s73, s71\ns_sub_u32 s75, s75, s71\ns_sub_u32 s74, s74, s75")
            a(f"s_mul_i32 s74, s74, s72\ns_mul_i32 s{dst}, s73, 11\ns_add_u32 s{dst}, s{dst}, s74")
        a("s_sub_u32 s3, s3, s38")
        a(f"s_lshl_b32 s46, s{S_X}, 1\ns_add_u32 s46, s46, s47")
        a("s_lshl_b32 s38, s38, 11\ns_lshl_b32 s69, s46, 23\ns_add_u32 s38, s38, s69\ns_add_u32 s38, s38, 7340032")
        a("s_lshl_b32 s39, s3, 11")
        for k in range(5):
            a(f"s_mov_b32 s{70+k}, {4096*(k+1)}")
        a("v_lshrrev_b32 v3, 1, v1\nv_lshlrev_b32 v3, 8, v3\nv_and_b32 v4, 1, v1\nv_lshlrev_b32 v4, 6, v4")
        a("v_add_u32 v3, v3, v4\nv_lshl_add_u32 v3, v2, 4, v3")
        a("v_mul_u32_u24 v4, 6144, v2\nv_lshl_add_u32 v4, v1, 4, v4")
        a(f"s_and_b32 s69, s{S_WAVE}, 2\ns_lshl_b32 s69, s69, 1\ns_add_u32 s69, s69, {A_FLAG}\nv_mov_b32 v5, s69")
        a("s_waitcnt lgkmcnt(0)")
        self.stamp(8)
        self.srd(SA, P_K, "s39", add="s38")
        n = [0]

        def thr():
            dep = DEP0 if n[0] < N0 else (DEP if n[0] < 24 else self.opt.get("depv", 7))
            if n[0] == DEP0:
                if self.opt.get("lay") == 1:
                    a("s_branch L_att1")
                a.section("att")
                a.label("L_att1")
                a("s_barrier")
            if n[0] >= dep:
                a(f"s_waitcnt vmcnt({dep-1})")
            n[0] += 1
        for k in range(12):
            if k == 3:
                self.srd(SB, P_V, "s39", add="s38")
                self.ws_setup()
                self.srd(SC, P_X, 1152)
            if k == 7:
                self.tag_setup(vT)
                self.sel_setup(SEL, 200, 201, 202)
            for lvl, at in ((1, self.opt.get("go1", 7)), (2, self.opt.get("go", 8))):
                if k == at:
                    a(f"v_mov_b32 v6, {lvl}\nv_mov_b32 v200, {A_GO}\nds_max_u32 v200, v6")
            if k >= 10:
                a(f"s_cmp_gt_u32 s3, {k}\ns_cbranch_scc0 L_att_k11")
            for lam in range(2):
                r = KR + 8 * k + 4 * lam
                so = "0" if k < 2 else f"s{69 + k // 2}"
                thr()
                a(f"buffer_load_dwordx4 v[{r}:{r+3}], v3, s[{SA}:{SA+3}], {so} offen offset:{(k & 1) * 2048 + lam * 128} nt")
        a.label("L_att_k11")
        after = {t: 23 - t for t in range(24)}

        def vload(t):
            r = VR + 4 * t
            so = "0" if t < 16 else "s70"
            a(f"buffer_load_dwordx4 v[{r}:{r+3}], v4, s[{SB}:{SB+3}], {so} offen offset:{(t & 15) * 256} nt")
        VC = self.opt.get("vc", 17)
        for t in range(VC):
            thr()
            vload(t)
            if t == 2:
                a(f"s_and_b32 s38, s{S_WAVE}, 2\ns_lshl_b32 s38, s38, 8\ns_add_u32 s38, s38, {A_QL}")
                a("v_bfe_u32 v3, v0, 1, 1\nv_lshlrev_b32 v3, 8, v3\nv_and_b32 v6, 1, v0\nv_lshl_add_u32 v3, v6, 6, v3")
                a(f"v_lshl_add_u32 v3, v2, 4, v3\nv_add_u32 v3, s38, v3\nv_lshrrev_b32 v6, 2, v1\nv_mov_b32 v200, {A_ZERO}")
                for m in range(4):
                    a(f"v_cmp_eq_u32 vcc, {m}, v6\nv_cndmask_b32 v{PP+m}, v200, v3, vcc")
            if t == 4:
                a("s_cmp_eq_u32 s45, 11\ns_cselect_b32 s72, 2, 4")
                a(f"s_and_b32 s73, s{S_WAVE}, 2\ns_cmp_eq_u32 s45, 11\ns_cselect_b32 s73, s73, 0")
                for e in range(4):
                    a(f"s_add_u32 s38, s73, {e}\ns_lshl_b32 s{8+e}, s38, 10\ns_add_u32 s{8+e}, s{8+e}, {A_CMB}\ns_lshl_b32 s38, s38, 4\ns_add_u32 s{12+e}, s38, {A_ST}")
                    if e >= 2:
                        a(f"s_cmp_eq_u32 s72, 2\ns_cselect_b32 s{8+e}, {A_ZERO}, s{8+e}\ns_cselect_b32 s{12+e}, {A_NEG}, s{12+e}")
                a(f"s_lshl_b32 s16, s{S_WAVE}, 4\ns_add_u32 s16, s16, {A_ST}\ns_lshl_b32 s17, s{S_WAVE}, 10\ns_add_u32 s17, s17, {A_CMB}\ns_lshl_b32 s18, s73, 1")
                a("s_mul_i32 s38, s47, 11\ns_sub_u32 s38, s45, s38\ns_mul_i32 s39, s46, 12\ns_add_u32 s38, s38, s39")
                a(f"s_mul_i32 s74, s38, {OPSLOT}\ns_add_u32 s74, s74, {OP}\ns_sub_u32 s19, s3, 2\ns_sub_u32 s20, s3, 1")
                a("s_mov_b32 s78, 0xaaaaaaaa\ns_mov_b32 s79, 0xaaaaaaaa\nv_mul_u32_u24 v3, 3, v2")
            if t == self.opt.get("mgv", 99):
                a(f"v_mov_b32 v6, 1\nv_mov_b32 v200, {A_MG}\ns_mov_b64 exec, 1\nds_add_u32 v200, v6\ns_mov_b64 exec, -1")
            if t == 5:
                a("s_mov_b32 s21, 0")
            if t == self.opt.get("lead", 99):
                a("s_mov_b32 s21, 1")
            if t == BUR - 1:
                self.stamp(9)
            if BUR - 1 <= t < VC - 1:
                a(f"ds_read_b32 v6, v5\ns_waitcnt lgkmcnt(0)\nv_cmp_ne_u32 vcc, 0, v6\ns_cbranch_vccnz L_bur_{t+1}")
        a(f"s_mov_b32 s{S_CNT}, 0")
        a.label("L_q_wait")
        a(f"ds_read_b32 v6, v5\ns_waitcnt lgkmcnt(0)\nv_cmp_ne_u32 vcc, 0, v6\ns_cbranch_vccnz L_bur_{VC}")
        a(f"s_add_u32 s{S_CNT}, s{S_CNT}, 1\ns_cmp_lt_u32 s{S_CNT}, {SPIN_MAX*16}\ns_cbranch_scc1 L_q_wait\ns_branch L_bur_{VC}")
        for t in range(BUR, 24):
            a.label(f"L_bur_{t}")
            vload(t)
        a.label("L_bur_24")
        self.stamp(1)
        if self.opt.get("mg", -1) < 0 and "mgv" not in self.opt:
            a("s_cmp_eq_u32 s21, 0\ns_cbranch_scc0 L_att_lead")
            self.after_mg = True
            a(f"v_mov_b32 v4, {A_MG}\nv_mov_b32 v5, 1\ns_mov_b64 exec, 1\nds_add_u32 v4, v5\ns_mov_b64 exec, -1")
        a.label("L_att_lead")
        a("v_readfirstlane_b32 s76, v6")

        self.stamp(2)
        QS_ = (208, 216, 200, 248)
        for m in range(4):
            a(f"ds_read_b128 v[{QS_[m]}:{QS_[m]+3}], v{PP+m}\nds_read_b128 v[{QS_[m]+4}:{QS_[m]+7}], v{PP+m} offset:128")
        for m in range(4):
            a(f"s_waitcnt lgkmcnt({6 - 2 * m})" if not self.stamps else "s_waitcnt lgkmcnt(0)")
            for c in range(3):
                k = 3 * m + c
                if k >= 10:
                    a(f"s_cmp_gt_u32 s3, {k}\ns_cbranch_scc0 L_att_m11")
                for lam in range(2):
                    self.mfma(D + 4 * c, QS_[m] + 4 * lam, KR + 8 * k + 4 * lam, m == 0 and lam == 0)
        a.label("L_att_m11")
        S, Y = 8, 12
        a("v_lshlrev_b32 v19, 4, v0\nv_add_u32 v20, s17, v19")
        for e in range(4):
            a(f"v_add_u32 v{24+e}, s{8+e}, v19")
        a("v_lshrrev_b32 v19, 5, v0\nv_lshlrev_b32 v33, 6, v19\nv_lshlrev_b32 v32, 9, v19\nv_lshlrev_b32 v19, 3, v19")
        for c in range(3):
            a(f"v_cndmask_b32 v{Y+c}, v{D+4*c+2}, v{D+4*c+1}, s[78:79]\nv_cndmask_b32 v{S+c}, v{D+4*c}, v{D+4*c+3}, s[78:79]")
        for c in range(3):
            self.dpp("v_add_f32", S + c, Y + c, S + c, "quad_perm:[1,0,3,2]")
        self.rnd2(S, S + 1, Y)
        self.rnd1(S + 2)
        for c in range(3):
            a(f"v_mul_f32 v{S+c}, {hx(f2u(128 ** -0.5))}, v{S+c}")
        self.rnd2(S, S + 1, Y)
        self.rnd1(S + 2)
        a(f"v_cmp_gt_i32 vcc, s19, v3\nv_cmp_gt_i32 s[78:79], s20, v3\nv_mov_b32 v4, 0xff800000")
        a(f"v_cndmask_b32 v{S+2}, v4, v{S+2}, vcc\nv_cndmask_b32 v{S+1}, v4, v{S+1}, s[78:79]")
        MX, LS = 16, 17
        a(f"v_max3_f32 v{MX}, v{S}, v{S+1}, v{S+2}")
        par = ("quad_perm:[2,3,0,1]", "row_ror:4", "row_ror:8")
        self.row_all("v_max_f32", [MX], par)
        self.xrow_all("v_max_f32", [MX], [18])
        for c in range(3):
            a(f"v_sub_f32 v{S+c}, v{S+c}, v{MX}")
        for c in range(3):
            a(f"v_mul_f32 v{S+c}, {hx(f2u(LOG2E))}, v{S+c}")
        for c in range(3):
            a(f"v_exp_f32 v{S+c}, v{S+c}")
        for c in range(3):
            self.dpp("v_mov_b32", Y + c, S + c, None, "quad_perm:[1,0,3,2]")
        for c in range(3):
            a(f"v_cvt_pk_bf16_f32 v{PP+c}, v{S+c}, v{Y+c}")
        self.stamp(3)
        XS_ = (X0, 6)
        AS_ = (A0, A1)
        TS = self.opt.get("ts", 14)
        WS = 35
        self.dpp("v_mov_b32", XS_[0], PP, None, "row_newbcast:0")
        self.diag(AS_[0], XS_[0], SEL)
        for t in range(24):
            if t == self.opt.get("lsum", 3):
                a(f"v_add_f32 v{LS}, v{S}, v{S+1}\nv_add_f32 v{LS}, v{LS}, v{S+2}")
                a("v_and_b32 v21, 1, v0\nv_lshl_add_u32 v21, v21, 3, s16\nv_mov_b32 v22, s18\nv_mov_b32 v23, 1")
                self.row_all("v_add_f32", [LS], par)
                self.xrow_all("v_add_f32", [LS], [18])
                a(f"s_mov_b64 exec, 3\nds_write_b64 v21, v[{MX}:{LS}]\ns_mov_b64 exec, 1\nds_add_u32 v22, v23 offset:8\ns_mov_b64 exec, -1")
                a("v_add_u32 v21, s16, v19")
                for e in range(4):
                    a(f"v_add_u32 v{28+e}, s{12+e}, v19")
                a("v_lshl_add_u32 v32, v1, 5, v32\nv_and_b32 v34, 1, v2\nv_lshl_add_u32 v32, v34, 4, v32")
                a("v_and_b32 v34, 3, v0\nv_lshl_add_u32 v33, v34, 4, v33")
            if t == self.opt.get("mgl", 8) and "lead" in self.opt:
                a("s_cmp_eq_u32 s21, 0\ns_cbranch_scc1 L_att_lead2")
                a(f"v_mov_b32 v72, {A_MG}\nv_mov_b32 v73, 1\ns_mov_b64 exec, 1\nds_add_u32 v72, v73\ns_mov_b64 exec, -1")
                a.label("L_att_lead2")
            if t == self.opt.get("mg", -1):
                a(f"v_mov_b32 v72, {A_MG}\nv_mov_b32 v73, 1\ns_mov_b64 exec, 1\nds_add_u32 v72, v73\ns_mov_b64 exec, -1")
            if t == self.opt.get("hold", 16):
                a(f"v_mov_b32 v72, {A_PUB}\nv_mov_b32 v73, 1\nds_max_u32 v72, v73")
            if t == TS:
                a(f"s_mov_b32 s{S_CNT}, 0")
                a.label("L_st_loop")
                a("ds_read_b32 v72, v22 offset:8")
                for e in range(4):
                    a(f"ds_read_b64 v[{74+2*e}:{75+2*e}], v{28+e}")
                a("ds_read_b32 v82, v21\ns_waitcnt lgkmcnt(0)\nv_cmp_ne_u32 vcc, s72, v72\ns_cbranch_vccnz L_st_retry")
                a.label("L_st_ok")

                def cold_st():
                    a.label("L_st_retry")
                    a(f"s_add_u32 s{S_CNT}, s{S_CNT}, 1\ns_cmp_lt_u32 s{S_CNT}, {SPIN_MAX*8}\ns_cbranch_scc1 L_st_loop\ns_branch L_st_ok")
                self.cold.append(cold_st)
                a("v_max3_f32 v84, v74, v76, v78\nv_max_f32 v84, v84, v80")
                for r in (74, 76, 78, 80, 82):
                    a(f"v_sub_f32 v{r}, v{r}, v84")
                for r in (74, 76, 78, 80, 82):
                    a(f"v_mul_f32 v{r}, {hx(f2u(LOG2E))}, v{r}")
                for r in (74, 76, 78, 80):
                    a(f"v_exp_f32 v{r}, v{r}")
                a(f"v_exp_f32 v{WS}, v82\nv_mul_f32 v85, v74, v75")
                for r in (76, 78, 80):
                    a(f"v_fmac_f32 v85, v{r}, v{r+1}")
                a("v_mov_b32 v86, v84\nv_mov_b32 v87, v85")
                self.tag4(84, vT)
                a("s_mov_b32 s78, 15\ns_mov_b32 s79, 15\ns_mov_b64 exec, s[78:79]")
                if self.fast:
                    a("s_cmp_eq_u32 s76, 2\ns_cbranch_scc0 L_st_slow")
                    a(f"buffer_store_dwordx4 v[84:87], v33, s[{SW}:{SW+3}], s74 offen offset:1024")
                    a.label("L_st_done")

                    def cold_st2():
                        a.label("L_st_slow")
                        a(f"buffer_store_dwordx4 v[84:87], v33, s[{SW}:{SW+3}], s74 offen offset:1024 sc1\ns_branch L_st_done")
                    self.cold.append(cold_st2)
                else:
                    a(f"buffer_store_dwordx4 v[84:87], v33, s[{SW}:{SW+3}], s74 offen offset:1024 sc1")
                a("s_mov_b64 exec, -1\ns_sub_u32 s72, s72, 1")
            if t + 1 < 24:
                self.dpp("v_mov_b32", XS_[(t + 1) & 1], PP + ((t + 1) >> 3), None, f"row_newbcast:{2 * ((t + 1) & 7)}")
            a(f"s_waitcnt vmcnt({after[t] + (1 if t >= TS else 0)})")
            self.mfma(O, AS_[t & 1], VR + 4 * t, t == 0)
            if t + 1 < 24:
                self.diag(AS_[(t + 1) & 1], XS_[(t + 1) & 1], SEL)
        self.stamp(4)
        for r in range(4):
            a(f"v_mul_f32 v{O+r}, v{WS}, v{O+r}")
        a(f"ds_write_b128 v20, v[{O}:{O+3}]")
        a("s_mov_b64 exec, 1\nds_add_rtn_u32 v23, v22, v23\ns_mov_b64 exec, -1")
        for e in range(4):
            a(f"ds_read_b128 v[{72+4*e}:{75+4*e}], v{24+e}")
        a("s_waitcnt lgkmcnt(4)" if not self.stamps else "s_waitcnt lgkmcnt(0)")
        a("v_readfirstlane_b32 s38, v23")
        a("s_cmp_eq_u32 s38, s72\ns_cbranch_scc0 L_att_done")
        a("s_waitcnt lgkmcnt(2)" if not self.stamps else "s_nop 0")
        a("v_pk_add_f32 v[72:73], v[72:73], v[76:77]\nv_pk_add_f32 v[74:75], v[74:75], v[78:79]")
        a("s_waitcnt lgkmcnt(0)")
        a("v_pk_add_f32 v[80:81], v[80:81], v[84:85]\nv_pk_add_f32 v[82:83], v[82:83], v[86:87]")
        a("v_pk_add_f32 v[72:73], v[72:73], v[80:81]\nv_pk_add_f32 v[74:75], v[74:75], v[82:83]")
        self.tag4(72, vT)
        if self.fast:
            a("s_cmp_eq_u32 s76, 2\ns_cbranch_scc0 L_att_slow")
            a(f"buffer_store_dwordx4 v[72:75], v32, s[{SW}:{SW+3}], s74 offen")

            def cold_o():
                a.label("L_att_slow")
                a(f"buffer_store_dwordx4 v[72:75], v32, s[{SW}:{SW+3}], s74 offen sc1\ns_branch L_att_pub")
            self.cold.append(cold_o)
        else:
            a(f"buffer_store_dwordx4 v[72:75], v32, s[{SW}:{SW+3}], s74 offen sc1")
        a.label("L_att_pub")
        a(f"v_mov_b32 v76, {A_PUB}\nds_write_b32 v76, v76")
        a.label("L_att_done")
        self.stamp(5)
        a("s_waitcnt lgkmcnt(0)")
        a("s_sub_u32 s38, s45, 2\ns_cmp_lt_u32 s38, 18\ns_cbranch_scc0 L_att_exit")
        a(f"s_lshl_b32 s77, s{S_WAVE}, 8")
        self.const_addr(77, 54, 55)
        self.const_loads(40, 54, 55)
        a("s_waitcnt vmcnt(0)\ns_branch L_s4")
        a.label("L_att_exit")
        self.dump_stamps()
        a("s_endpgm")

    M_W1, M_W2, M_W2T, M_XR, M_SEL, M_MSK, M_DA, M_DB, M_A0, M_A1 = 72, 108, 140, 208, 228, 232, 236, 240, 244, 248
    M_VX, M_VP, M_VS, M_B1 = 252, 253, 254, 255

    def mlpw(self):
        a = self.a
        vT = 7
        DM = self.opt.get("dm", 30)
        a.label("L_mlpw")
        a(f"s_sub_u32 s45, s{S_U}, 9\ns_sub_u32 s46, s{S_WAVE}, 4")
        a("s_mov_b32 s44, 0\ns_cmp_lt_u32 s46, 2\ns_cbranch_scc1 L_mlpw_go\ns_sub_u32 s38, s45, 2\ns_cmp_lt_u32 s38, 18\ns_cbranch_scc0 L_end")
        if self.opt.get("c3", 0):
            a(f"s_mul_i32 s39, s{S_X}, 18\ns_add_u32 s38, s38, s39\ns_bfe_u32 s38, s38, 0x30001\ns_cmp_eq_u32 s38, 3\ns_cbranch_scc1 L_mlpw_go")
        a("s_cmp_eq_u32 s46, 2\ns_cbranch_scc1 L_tile_a")
        a.label("L_mlpw_go")
        a("s_cmp_eq_u32 s46, 0\ns_cbranch_scc0 L_mlpw_noinit")
        a("v_mov_b32 v3, 0\nv_mov_b32 v8, 0\nv_mov_b32 v9, 0\nv_mov_b32 v10, 0\nv_mov_b32 v11, 0\nv_lshlrev_b32 v6, 4, v0")
        a("v_mov_b32 v12, 0xff800000\nv_mov_b32 v13, 0\nv_mov_b32 v14, 0xff800000\nv_mov_b32 v15, 0")
        a(f"ds_write_b128 v3, v[8:11] offset:{A_CNT}\nds_write_b128 v3, v[12:15] offset:{A_NEG}\nds_write_b128 v6, v[8:11] offset:{A_ZERO}")
        a(f"ds_write_b128 v3, v[8:11] offset:{A_FLAG}\nds_write_b128 v3, v[8:11] offset:{A_PUB}")
        a.label("L_mlpw_noinit")
        a(f"s_mul_i32 s38, s46, 384\ns_add_u32 s38, s38, {A_XS}")
        a(f"v_lshl_add_u32 v{self.M_VX}, v0, 1, s38")
        a(f"v_lshl_add_u32 v3, v2, 2, s38")
        a(f"s_lshl_b32 s38, s46, 8\ns_add_u32 s38, s38, {A_F1P}")
        a(f"v_lshlrev_b32 v4, 5, v1\nv_lshl_add_u32 v226, v2, 4, v4\nv_add_u32 v{self.M_VP}, s38, v226")
        a("s_and_b32 s77, s45, 1")
        a("v_and_b32 v4, 31, v0\nv_lshlrev_b32 v4, 2, v4\nv_lshrrev_b32 v5, 5, v0\nv_lshl_add_u32 v227, v5, 8, v4\nv_lshl_add_u32 v4, v5, 9, v4")
        a(f"s_lshl_b32 s38, s77, 7\ns_add_u32 s38, s38, {A_F1P}\nv_add_u32 v{self.M_VS}, s38, v4")
        a("v_lshrrev_b32 v4, 3, v1\nv_lshl_add_u32 v4, v2, 1, v4\nv_and_b32 v5, 7, v1\nv_lshlrev_b32 v5, 4, v5")
        a("s_cmp_eq_u32 s44, 0\ns_cbranch_scc0 L_mlpw_t")
        a("s_waitcnt lgkmcnt(0)\ns_barrier")
        self.ws_setup()
        self.tag_setup(vT)
        a.label("L_mlpw_t")
        a("s_waitcnt lgkmcnt(0)")
        a(f"v_mov_b32 v{vT}, s{S_T}")
        self.sel_setup(self.M_SEL, 8, 9, 13)
        a(f"s_mul_i32 s47, s{S_X}, 18\ns_add_u32 s47, s47, s45\ns_sub_u32 s47, s47, 2")
        self.srd(SA, P_W1, 576 * 9216)
        self.srd(SB, P_W2, 4608 * 1152)
        self.srd(12, P_B1, 9216)
        a("v_mul_u32_u24 v6, 9216, v4\nv_add_u32 v6, v6, v5")
        a(f"s_lshl_b32 s70, s77, 2\ns_add_u32 s70, s70, s46\ns_mul_i32 s18, s70, 288\ns_mul_i32 s70, s70, {72*9216}")
        a("s_lshr_b32 s39, s47, 1\ns_lshl_b32 s39, s39, 7\ns_add_u32 s70, s70, s39\ns_lshl_b32 s39, s47, 6")
        a(f"s_lshl_b32 s19, s47, 9\ns_lshl_b32 s38, s46, 7\ns_add_u32 s19, s19, s38\ns_add_u32 s19, s19, {EX-128}\ns_lshl_b32 s38, s77, 7\ns_add_u32 s19, s19, s38")
        a(f"s_xor_b32 s16, s47, 1\ns_lshl_b32 s16, s16, 9\ns_add_u32 s16, s16, {EX}")
        a("s_mov_b32 s74, 0x000f000f\ns_lshl_b32 s38, s77, 2\ns_sub_u32 s38, 4, s38\ns_lshl_b32 s74, s74, s38\ns_mov_b32 s21, s74")
        a("v_and_b32 v8, 1, v0\nv_lshlrev_b32 v8, 4, v8\nv_mov_b32 v9, 0xffff\nv_lshlrev_b32 v8, v8, v9\nv_bfe_u32 v9, v0, 1, 2")
        for d in range(4):
            a(f"v_cmp_eq_u32 vcc, {d}, v9\nv_cndmask_b32 v{self.M_MSK+d}, 0, v8, vcc")
        a(f"v_and_b32 v8, 31, v0\nv_lshl_add_u32 v{self.M_B1}, v8, 1, s39")
        self.srd(SC, P_X, 1152)
        a("v_and_b32 v8, 1, v2\nv_lshlrev_b32 v8, 4, v8\nv_lshrrev_b32 v9, 1, v2\nv_lshl_add_u32 v8, v9, 3, v8")
        a("v_mul_u32_u24 v8, 1152, v8\nv_lshl_add_u32 v8, v1, 4, v8")
        a("v_cmp_gt_u32 vcc, 8, v1\nv_mov_b32 v9, 0x7fffffff\nv_cndmask_b32 v9, v9, v8, vcc")
        a(f"s_mul_i32 s71, s47, {32*1152}\ns_lshl_b32 s72, s46, 8\ns_add_u32 s72, s72, s71\ns_add_u32 s73, s72, 4608")
        a(f"s_lshl_b32 s77, s{S_WAVE}, 8\ns_mov_b32 s76, 2048")
        self.const_addr(77, 54, 55)
        self.const_addr(76, 70, 71)
        a("s_cmp_lt_u32 s46, 2\ns_cbranch_scc0 L_mlpw_gate")
        a("s_lshl_b32 s38, s45, 1\ns_add_u32 s38, s38, s46\ns_cmp_ge_u32 s38, 23\ns_cselect_b32 s38, 1, 0")
        a(f"s_lshl_b32 s39, s{S_X}, 1\ns_add_u32 s38, s38, s39\ns_lshl_b32 s74, s38, 10\ns_add_u32 s74, s74, {QB}")
        a("v_lshlrev_b32 v10, 4, v0")
        a(f"s_lshl_b32 s38, s46, 9\ns_add_u32 s38, s38, {A_QL}\nv_lshl_add_u32 v12, v0, 3, s38")
        a(f"s_lshl_b32 s38, s46, 2\ns_add_u32 s38, s38, {A_FLAG}\nv_mov_b32 v13, s38")
        a("s_getreg_b32 s69, hwreg(HW_REG_XCC_ID, 0, 4)\ns_lshl_b32 s69, s69, 8\ns_or_b32 s69, s69, 0x1000")
        self.lds_wait(A_GO, 2, 11, 14, 4, "L_go")
        a("s_setprio 3")
        NP = self.opt.get("np", 3)

        def qload(k):
            a(f"buffer_load_dwordx4 v[{16+4*k}:{19+4*k}], v10, s[{SW}:{SW+3}], s74 offen sc1")
        self.stamp(7)
        for k in range(NP):
            qload(k)
            if k + 1 < NP:
                a(f"s_sleep {self.opt.get('qgap', 8)}")
        a(f"s_mov_b32 s{S_CNT}, 0")
        a.label("L_qp_loop")
        for k in range(NP):
            self.clean([16 + 4 * k], [], None, 14, waits=[NP - 1])
            a(f"s_cbranch_vccz L_qp_ok{k}")
            qload(k)
        a(f"s_add_u32 s{S_CNT}, s{S_CNT}, 1\ns_cmp_lt_u32 s{S_CNT}, {SPIN_MAX}\ns_cbranch_scc1 L_qp_loop")
        a("s_waitcnt vmcnt(0)")
        for k in range(NP - 1, -1, -1):
            a.label(f"L_qp_ok{k}")
            a(f"s_mov_b32 s38, 0x07060302\nv_perm_b32 v14, v{17+4*k}, v{16+4*k}, s38\nv_perm_b32 v15, v{19+4*k}, v{18+4*k}, s38")
            a(f"v_and_b32 v11, 0x1f00, v{16+4*k}")
            if k:
                a("s_branch L_qp_got")
        a.label("L_qp_got")
        a("ds_write_b64 v12, v[14:15]\nv_cmp_ne_u32 vcc, s69, v11\ns_cmp_eq_u64 vcc, 0\ns_cselect_b32 s69, 2, 1\nv_mov_b32 v11, s69")
        a("ds_write_b32 v13, v11\ns_waitcnt lgkmcnt(0)")
        self.stamp(8)
        a("s_setprio 0\ns_sub_u32 s38, s45, 2\ns_cmp_lt_u32 s38, 18\ns_cbranch_scc0 L_att_exit")
        a.label("L_mlpw_gate")
        self.lds_wait(A_MG, self.opt.get("mgn", 4), 11, 14, 2, "L_mg")
        self.stamp(1)
        D1 = self.opt.get("dm1", 30)
        a("s_cmp_eq_u32 s46, 0\ns_cbranch_scc0 L_mlp_c1")
        self.const_loads(56, 70, 71)
        a.label("L_mlp_c1")
        self.const_loads(40, 54, 55)
        a(f"buffer_load_ushort v{self.M_B1}, v{self.M_B1}, s[12:15], 0 offen nt")
        a(f"v_mov_b32 v11, {A_PUB}")
        seq = []
        for s in range(9):
            r = self.M_W1 + 4 * s
            seq.append(f"buffer_load_dwordx4 v[{r}:{r+3}], v6, s[{SA}:{SA+3}], s70 offen nt" + (f"\ns_add_u32 s70, s70, {8*9216}" if s < 8 else ""))
        w2 = [f"buffer_load_dwordx4 v[{self.M_W2+4*s}:{self.M_W2+4*s+3}], v8, s[{SB}:{SB+3}], {'s72' if s < 4 else 's73'} offen offset:{(s & 3) * 1152} nt" for s in range(8)]
        if self.opt.get("il", 1):
            seq = [x for pair in zip(seq, w2 + [None]) for x in pair if x]
        else:
            seq += w2
        for k, t in enumerate(seq):
            a(f"s_waitcnt vmcnt({D1-1})")
            a(t)
            if k + 1 < len(seq):
                a(f"ds_read_b32 v14, v11\ns_waitcnt lgkmcnt(0)\nv_cmp_ne_u32 vcc, 0, v14\ns_cbranch_vccnz L_mh_{k+1}")
        a(f"s_branch L_mb_{len(seq)}")

        def cold_hold():
            for k in range(1, len(seq)):
                a.label(f"L_mh_{k}")
                a(f"s_mov_b32 s{S_CNT}, 0")
                a.label(f"L_mh_{k}_l")
                a(f"v_cmp_lt_u32 vcc, 1, v14\ns_cbranch_vccnz L_mb_{k}\nds_read_b32 v14, v11\ns_add_u32 s{S_CNT}, s{S_CNT}, 1")
                a(f"s_cmp_lt_u32 s{S_CNT}, {SPIN_MAX*8}\ns_waitcnt lgkmcnt(0)\ns_cbranch_scc1 L_mh_{k}_l\ns_branch L_mb_{k}")
        self.cold.append(cold_hold)
        for k, t in enumerate(seq):
            if k:
                a.label(f"L_mb_{k}")
                if DM < 17:
                    a(f"s_waitcnt vmcnt({DM-1})")
                a(t)
        a.label(f"L_mb_{len(seq)}")
        a("s_cmp_eq_u32 s46, 3\ns_cbranch_scc0 L_mlp_issued")
        a("s_add_u32 s72, s71, 1024\ns_add_u32 s73, s72, 4608")
        for s in range(8):
            r = self.M_W2T + 4 * s
            if DM < 25:
                a(f"s_waitcnt vmcnt({DM-1})")
            a(f"buffer_load_dwordx4 v[{r}:{r+3}], v9, s[{SB}:{SB+3}], {'s72' if s < 4 else 's73'} offen offset:{(s & 3) * 1152} nt")
        a.label("L_mlp_issued")
        a(f"buffer_load_dword v30, v227, s[{SW}:{SW+3}], s16 offen sc1\nbuffer_load_dword v31, v227, s[{SW}:{SW+3}], s16 offen offset:128 sc1")
        a("s_waitcnt vmcnt(19)")

    def stat_reduce(self, v, t, vaddrA, vaddrB):
        a = self.a
        for p in range(3):
            a(f"v_permlane32_swap_b32 v{v+2*p}, v{v+2*p+1}")
        for p in range(3):
            a(f"v_add_f32 v{v+2*p}, v{v+2*p}, v{v+2*p+1}")
        a(f"v_mov_b32 v{t}, v{v+4}\nv_permlane16_swap_b32 v{v}, v{v+2}\nv_permlane16_swap_b32 v{t}, v{v+4}")
        a(f"v_add_f32 v{v}, v{v}, v{v+2}\nv_add_f32 v{v+4}, v{v+4}, v{t}")
        self.row_all("v_add_f32", [v, v + 4])
        a("s_mov_b64 exec, s[78:79]")
        a(f"ds_write_b32 v{vaddrA}, v{v}\nds_write_b32 v{vaddrB}, v{v+4}")
        a("s_mov_b64 exec, -1")

    A2 = (25, 49)

    def s4_block(self, boff, sfx, last):
        a = self.a
        o = 0 if sfx == 0 else 24
        R, va = (40, 54) if sfx == 0 else (56, 70)
        XV, GA, AV, BV = 8 + o, 9 + o, 10 + o, 11 + o
        lp, rt = self.lab("cst"), self.lab("cstr")
        a(f"s_mov_b32 s{S_CNT}, 0")
        a.label(lp)
        self.clean([R, R + 4, R + 8], [], None, 4)
        a(f"s_cbranch_vccnz {rt}")
        a.label(lp + "_ok")

        def cold():
            a.label(rt)
            self.const_loads(R, va, None)
            a(f"s_add_u32 s{S_CNT}, s{S_CNT}, 1\ns_cmp_lt_u32 s{S_CNT}, {SPIN_MAX}\ns_waitcnt vmcnt(0)\ns_cbranch_scc1 {lp}\ns_branch {lp}_ok")
        self.cold.append(cold)
        for k in range(3):
            self.rscatter(R + 4 * k)
        self.rnd2(R, R + 4, 4)
        self.rnd1(R + 8)
        a(f"v_lshlrev_b32 v{XV}, 16, v{R+12}\nv_mov_b32 v{GA}, v{R}\nv_mov_b32 v{BV}, v{R+4}\nv_add_f32 v{AV}, 1.0, v{R+8}")
        self.rnd1(AV)
        a(f"v_lshlrev_b32 v{12+o}, 4, v1\nv_lshl_add_u32 v{12+o}, v2, 2, v{12+o}\nv_add_u32 v{12+o}, s{boff}, v{12+o}")
        a(f"ds_write_b32 v{12+o}, v{AV} offset:{A_AA}\nds_write_b32 v{12+o}, v{BV} offset:{A_BB}")
        if not sfx:
            a(f"s_lshr_b32 s38, s{boff}, 2\ns_add_u32 s38, s38, {A_STAT}")
            a("v_and_b32 v14, 1, v2\nv_lshlrev_b32 v14, 3, v14\nv_lshrrev_b32 v15, 1, v2\nv_lshlrev_b32 v15, 2, v15")
            a("v_add3_u32 v14, v14, v15, s38\nv_add3_u32 v15, v15, 16, s38\nv_add_u32 v16, 32, v14\nv_add_u32 v17, 32, v15")
        E = 18 + o
        a(f"v_add_f32 v{BV}, v{BV}, v{BV}")
        a(f"v_mov_b32 v{E}, v{AV}\nv_mul_f32 v{E+1}, v{AV}, v{AV}\nv_mul_f32 v{E+2}, v{AV}, v{BV}")
        a(f"v_mul_f32 v{E+3}, 0.5, v{BV}\nv_mul_f32 v{E+4}, v{E+3}, v{E+3}\nv_mov_b32 v{E+5}, 0")
        if last:
            if sfx:
                for k in range(5):
                    a(f"v_add_f32 v{18+k}, v{18+k}, v{E+k}")
            self.stat_reduce(18, 24, 16, 17)
        a(f"v_add_f32 v{self.A2[sfx]}, v{AV}, v{AV}")
        a(f"v_mul_u32_u24 v{13+o}, 2304, v2\nv_lshl_add_u32 v{13+o}, v1, 4, v{13+o}\nv_add_u32 v{13+o}, s{boff}, v{13+o}")

    def s4_finish(self, blocks):
        a = self.a
        for G0, o in blocks:
            a(f"v_pk_add_f32 v[{G0}:{G0+1}], v[{G0}:{G0+1}], v[{G0+4}:{G0+5}]\nv_pk_add_f32 v[{G0+2}:{G0+3}], v[{G0+2}:{G0+3}], v[{G0+6}:{G0+7}]")
        if len(blocks) > 1:
            self.rscatter2(blocks[0][0], blocks[1][0])
        else:
            self.rscatter(blocks[0][0])
        for G0, o in blocks:
            XV, GA, AV, BV = 8 + o, 9 + o, 10 + o, 11 + o
            E = 18 + o
            a(f"v_fma_f32 v{E}, v{GA}, v{G0}, v{XV}")
            a(f"v_mul_f32 v{E+2}, v{AV}, v{E}\nv_mul_f32 v{E+1}, v{E}, v{E}")
            a(f"ds_write_b32 v{12+o}, v{E+2} offset:{A_U}")
            a(f"v_mul_f32 v{E+3}, v{self.A2[o > 0]}, v{E+2}\nv_mul_f32 v{E+4}, v{E+2}, v{E+2}\nv_mul_f32 v{E+5}, v{BV}, v{E+2}")
        if len(blocks) > 1:
            for k in range(0, 6, 2):
                a(f"v_pk_add_f32 v[{18+k}:{19+k}], v[{18+k}:{19+k}], v[{42+k}:{43+k}]")
        self.stat_reduce(18, 24, 14, 15)

    def poll(self, loads, grans, words, vtb, acc, sleep=0, waits=None):
        a = self.a
        lp = self.lab("poll")
        a(f"s_mov_b32 s{S_CNT}, 0")
        a.label(lp)
        for t in loads:
            a(t)
        n = len(loads)
        self.clean(grans, words, vtb, acc, waits or [n - 1 - k for k in range(n)])
        a(f"s_cbranch_vccnz {lp}_r")
        a.label(lp + "_ok")

        def cold():
            a.label(lp + "_r")
            if sleep:
                a(f"s_sleep {sleep}")
            a(f"s_add_u32 s{S_CNT}, s{S_CNT}, 1\ns_cmp_lt_u32 s{S_CNT}, {SPIN_MAX}\ns_cbranch_scc1 {lp}\ns_branch {lp}_ok")
        self.cold.append(cold)

    def s4_gate(self, sfx):
        a = self.a
        n = self.opt.get("wd", 4)
        if not n:
            return
        a(f"s_cmp_ge_u32 s{S_WAVE}, 4\ns_cbranch_scc0 L_wd{sfx}0\ns_waitcnt vmcnt({self.opt.get('wdv', 30)})")
        a(f"v_mov_b32 v4, {A_WD}\nv_mov_b32 v5, 1\ns_mov_b64 exec, 1\nds_add_u32 v4, v5\ns_mov_b64 exec, -1")
        a.label(f"L_wd{sfx}0")
        self.lds_wait(A_WD, n, 4, 5, 1, f"L_wd{sfx}")

    def s4_and_mlp(self):
        a = self.a
        vT = 7
        a.label("L_s4")
        a("s_setprio 3")
        self.stamp(6)
        a("s_mov_b32 s78, 0x00010001\ns_mov_b32 s79, 0x00010001")
        if self.opt.get("apr", 1):
            a(f"s_mul_i32 s74, s{S_X}, 18432\ns_add_u32 s74, s74, {APR}\ns_add_u32 s75, s74, {4*2304}")
        else:
            a(f"s_mov_b32 s74, {AP}\ns_mov_b32 s75, {AP + 4*2304}")
        a(f"v_lshlrev_b32 v26, 2, v0\nv_add_u32 v27, {A_STAT}, v26\nv_add_u32 v26, s18, v26")
        a(f"v_cmp_eq_u32 vcc, 1, v1\nv_cmp_eq_u32 s[38:39], 12, v1\nv_mov_b32 v29, {hx(f2u(1e-5))}\ns_or_b64 vcc, vcc, s[38:39]\ns_nop 1\nv_cndmask_b32 v28, 0, v29, vcc\nv_mov_b32 v29, 0")
        a(f"s_cmp_eq_u32 s{S_WAVE}, 4\ns_cbranch_scc0 L_s4_one")
        self.s4_block(77, 0, False)
        self.s4_block(76, 1, True)
        self.s4_gate("b")
        self.poll([f"buffer_load_dwordx4 v[56:59], v13, s[{SW}:{SW+3}], s74 offen sc1",
                   f"buffer_load_dwordx4 v[60:63], v13, s[{SW}:{SW+3}], s75 offen sc1",
                   f"buffer_load_dwordx4 v[64:67], v37, s[{SW}:{SW+3}], s74 offen sc1",
                   f"buffer_load_dwordx4 v[68:71], v37, s[{SW}:{SW+3}], s75 offen sc1"], [56, 60, 64, 68], [], None, 4, sleep=self.opt.get("apsl", 0))
        self.stamp(7)
        self.s4_finish([(56, 0), (64, 24)])
        a.label("L_s4_bar")
        a("s_waitcnt lgkmcnt(0)\ns_barrier")
        a(f"s_cmp_ge_u32 s{S_WAVE}, 4\ns_cbranch_scc0 L_att_exit")

        def cold_one():
            a.label("L_s4_one")
            self.s4_block(77, 0, True)
            self.s4_gate("a")
            self.poll([f"buffer_load_dwordx4 v[56:59], v13, s[{SW}:{SW+3}], s74 offen sc1",
                       f"buffer_load_dwordx4 v[60:63], v13, s[{SW}:{SW+3}], s75 offen sc1"], [56, 60], [], None, 4, sleep=self.opt.get("apsl", 0))
            self.stamp(7)
            self.s4_finish([(56, 0)])
            a("s_branch L_s4_bar")
        self.cold.insert(0, cold_one)
        self.stamp(2)
        a("ds_read2st64_b32 v[10:11], v27 offset0:0 offset1:1")
        for k, base in enumerate((A_U, A_AA, A_BB)):
            assert base % 256 == 128 or base % 256 == 0
            a(f"ds_read_b32 v{16+4*k}, v26 offset:{base}\nds_read_b32 v{17+4*k}, v26 offset:{base+256}")
        a(f"v_mov_b32 v12, {hx(f2u(1.0/576))}")
        a("s_waitcnt lgkmcnt(6)" if not self.stamps else "s_waitcnt lgkmcnt(0)")
        a("v_add_f32 v10, v10, v11")
        self.xrow_all("v_add_f32", [10], [11])
        a("v_fma_f32 v10, v10, v12, v28")
        nm, e2, ax, t3, a2, b2, m2, h2 = range(30, 38)

        def bc(op, d, k, s1=None):
            self.dpp(op, d, 10, s1, f"row_newbcast:{k}")
        bc("v_subrev_f32", nm, 0, 29)
        for d, k in ((e2, 1), (ax, 2), (t3, 3), (b2, 5), (a2, 4), (m2, 11), (h2, 12)):
            bc("v_mov_b32", d, k)
        bc("v_fmac_f32", e2, 0, nm)
        bc("v_fmac_f32", t3, 9, nm)
        a(f"v_rsq_f32 v{e2}, v{e2}")
        bc("v_fmac_f32", ax, 8, nm)
        bc("v_fmac_f32", b2, 10, nm)
        a(f"v_fmac_f32 v{a2}, v{t3}, v{nm}\nv_fmac_f32 v{m2}, v{e2}, v{ax}\nv_fmac_f32 v{b2}, v{e2}, v{a2}\nv_fmac_f32 v{h2}, v{e2}, v{b2}")
        a(f"v_fma_f32 v{h2}, -v{m2}, v{m2}, v{h2}\nv_mul_f32 v{nm}, v{nm}, v{e2}\nv_rsq_f32 v{h2}, v{h2}")
        a("s_waitcnt lgkmcnt(0)")
        for k in range(2):
            a(f"v_sub_f32 v{24+k}, v{24+k}, v{m2}")
        for k in range(2):
            a(f"v_fmac_f32 v{24+k}, v{nm}, v{20+k}")
        for k in range(2):
            a(f"v_fmac_f32 v{24+k}, v{e2}, v{16+k}")
        for k in range(2):
            a(f"v_mul_f32 v{24+k}, v{h2}, v{24+k}")
        a("v_cvt_pk_bf16_f32 v24, v24, v25")
        a(f"ds_write_b16 v{self.M_VX}, v24\nds_write_b16_d16_hi v{self.M_VX}, v24 offset:128")
        XR = self.M_XR
        for s in range(0, 8, 2):
            a(f"ds_read2_b32 v[{XR+s}:{XR+s+1}], v3 offset0:{4*s} offset1:{4*s+4}")
        a(f"ds_read_b32 v{XR+8}, v3 offset:128")
        a(f"v_lshlrev_b32 v{self.M_B1}, 16, v{self.M_B1}")
        a("v_lshlrev_b32 v8, 5, v1\nv_lshl_add_u32 v8, v2, 4, v8\nv_and_b32 v10, 3, v0")
        self.tagbyte(9, 10, vT)
        a(f"s_mul_i32 s38, s47, 2304\ns_add_u32 s38, s38, {FP}\ns_lshl_b32 s39, s46, 9\ns_add_u32 s39, s39, s38")
        a("s_waitcnt lgkmcnt(0)")
        self.stamp(3)
        Da, Db = self.M_DA, self.M_DB
        AS_ = (self.M_A0, self.M_A1)
        self.diag(AS_[0], XR, self.M_SEL)
        for s in range(9):
            if s + 1 < 9:
                self.diag(AS_[(s + 1) & 1], XR + s + 1, self.M_SEL)
            self.mfma(Db, AS_[s & 1], self.M_W1 + 4 * s, s == 0)
        self.fold2(Db, self.M_A0)
        a("s_mov_b32 exec_hi, 0\ns_mov_b32 exec_lo, 0x00ff00ff")
        a(f"ds_write_b128 v{self.M_VP}, v[{Db}:{Db+3}]")
        for k in range(4):
            a(f"v_perm_b32 v{40+k}, v{Db+k}, v{vT}, s{4+k}")
        a("s_mov_b32 exec_lo, s21")
        a(f"buffer_store_dwordx4 v[40:43], v226, s[{SW}:{SW+3}], s19 offen")
        a("s_mov_b64 exec, -1\ns_waitcnt lgkmcnt(0)\ns_barrier")
        self.stamp(4)
        a(f"ds_read2st64_b32 v[16:17], v{self.M_VS} offset0:0 offset1:1")
        a(f"s_mov_b32 s{S_CNT}, 0")
        a.label("L_ex")
        a(f"buffer_load_dword v18, v227, s[{SW}:{SW+3}], s16 offen sc1\nbuffer_load_dword v19, v227, s[{SW}:{SW+3}], s16 offen offset:128 sc1")
        self.clean([], [18, 19], 9, 10, waits=[1, 0])
        a("s_cbranch_vccnz L_ex_r")
        a.label("L_ex_ok")

        def resend():
            a("s_mov_b32 exec_hi, 0\ns_mov_b32 exec_lo, s21")
            a(f"buffer_store_dwordx4 v[40:43], v226, s[{SW}:{SW+3}], s19 offen sc1")

        def cold_ex():
            a.label("L_ex_r")
            a(f"s_cmp_eq_u32 s{S_CNT}, 6\ns_cbranch_scc0 L_ex_r2")
            resend()
            a("s_mov_b64 exec, -1")
            a.label("L_ex_r2")
            a(f"s_add_u32 s{S_CNT}, s{S_CNT}, 1\ns_cmp_lt_u32 s{S_CNT}, {SPIN_MAX}\ns_cbranch_scc1 L_ex\ns_branch L_ex_ok")
        self.cold.append(cold_ex)
        K1 = -2.0 * 0.7978845608028654 * LOG2E
        a(f"v_mov_b32 v12, {hx(f2u(K1))}")
        a("s_waitcnt lgkmcnt(0)\nv_pk_add_f32 v[16:17], v[16:17], v[18:19]")
        a("v_add_f32 v16, v16, v17\nv_mov_b32 v10, v16\nv_permlane32_swap_b32 v10, v16")
        a(f"v_add_f32 v16, v16, v10\nv_add_f32 v16, v16, v{self.M_B1}")
        a(f"v_mul_f32 v10, v16, v16\nv_fmac_f32 v12, {hx(f2u(K1 * 0.044715))}, v10\nv_mul_f32 v12, v12, v16")
        a("v_exp_f32 v12, v12\nv_add_f32 v12, 1.0, v12\nv_rcp_f32 v12, v12\nv_mul_f32 v16, v16, v12")
        a("v_cvt_pk_bf16_f32 v16, v16, v16")
        self.dpp("v_mov_b32", 16, 16, None, "row_ror:8", rm=0xc)

        def prep(s):
            for d in range(4):
                self.dpp("v_and_b32", AS_[s & 1] + d, 16, self.M_MSK + d, f"row_newbcast:{s}")
        a("s_cmp_eq_u32 s46, 3\ns_cbranch_scc1 L_f2_two")
        prep(0)
        for s in range(8):
            if s + 1 < 8:
                prep(s + 1)
            self.mfma(Da, AS_[s & 1], self.M_W2 + 4 * s, s == 0)
        self.tag4(Da, vT)
        a("s_mov_b32 exec_hi, 0")
        a(f"buffer_store_dwordx4 v[{Da}:{Da+3}], v8, s[{SW}:{SW+3}], s39 offen sc1")
        self.stamp(5)
        resend()
        self.dump_stamps()
        a("s_endpgm")
        a.label("L_f2_two")
        prep(0)
        for s in range(8):
            if s + 1 < 8:
                prep(s + 1)
            self.mfma(Da, AS_[s & 1], self.M_W2 + 4 * s, s == 0)
            self.mfma(Db, AS_[s & 1], self.M_W2T + 4 * s, s == 0)
        self.tag4(Da, vT)
        self.tag4(Db, vT)
        a("s_mov_b32 exec_hi, 0")
        a(f"buffer_store_dwordx4 v[{Da}:{Da+3}], v8, s[{SW}:{SW+3}], s39 offen sc1")
        a("s_mov_b32 exec_lo, 0x00ff00ff")
        a(f"buffer_store_dwordx4 v[{Db}:{Db+3}], v8, s[{SW}:{SW+3}], s38 offen offset:2048 sc1")
        self.stamp(5)
        resend()
        self.dump_stamps()
        a("s_endpgm")

    def lds_wait(self, addr, lvl, va, vd, sleep, name):
        a = self.a
        a(f"v_mov_b32 v{va}, {addr}\ns_mov_b32 s{S_CNT}, 0")
        a.label(name)
        a(f"ds_read_b32 v{vd}, v{va}\ns_waitcnt lgkmcnt(0)\nv_cmp_le_u32 vcc, {lvl}, v{vd}\ns_cbranch_vccnz {name}_ok")
        if sleep:
            a(f"s_sleep {sleep}")
        a(f"s_add_u32 s{S_CNT}, s{S_CNT}, 1\ns_cmp_lt_u32 s{S_CNT}, {SPIN_MAX*8}\ns_cbranch_scc1 {name}")
        a.label(name + "_ok")

    def wcu(self):
        a = self.a
        MB, WO, XA, XB, XO, XR, A0, A1, D, SEL, vT, TB, HG, OG, ST = 16, 88, 152, 156, 157, 160, 180, 184, 188, 192, 196, 197, 200, 220, 244
        VWO, VRW, VRR, VCOL, VQ = 248, 249, 250, 251, 252
        AS_ = (A0, A1)

        def tile_loads(dep=99):
            a("s_mul_i32 s38, s46, 288\nv_lshl_add_u32 v6, v0, 1, s38")
            for k in range(3):
                a(f"buffer_load_ushort v{10+k}, v6, s[{SC}:{SC+3}], 0 offen offset:{128*k}")
            a("v_mul_u32_u24 v6, 6912, v3\nv_add_u32 v6, v6, v4")
            a(f"s_mul_i32 s38, s46, {144*6912}\ns_lshl_b32 s39, s45, 7\ns_add_u32 s38, s38, s39")
            for s in range(18):
                r = MB + 4 * s
                if s >= dep:
                    a(f"s_waitcnt vmcnt({dep-1})")
                a(f"buffer_load_dwordx4 v[{r}:{r+3}], v6, s[{SA}:{SA+3}], s38 offen nt")
                if s < 17:
                    a(f"s_add_u32 s38, s38, {8*6912}")

        def gemv18(younger):
            self.diag(A0, XR, SEL)
            for s in range(18):
                a(f"s_waitcnt vmcnt({younger + 17 - s})")
                self.mfma(D, AS_[s & 1], MB + 4 * s, s == 0)
                if s + 1 < 18:
                    self.diag(AS_[(s + 1) & 1], XR + s + 1, SEL)

        def tile_gemv(younger, low, sxs):
            a(f"v_lshl_add_u32 v13, v0, 1, {sxs}\nv_lshl_add_u32 v14, v2, 2, {sxs}")
            a(f"s_mul_i32 s70, s46, {MPS}\ns_lshl_b32 s39, s45, 8\ns_add_u32 s70, s70, s39\ns_add_u32 s70, s70, {MP}")
            if low:
                a(f"s_mul_i32 s72, s46, 4608\ns_add_u32 s72, s39, s72\ns_add_u32 s72, s72, {ML}")
            a(f"s_waitcnt vmcnt({younger + 18})")
            self.silu_to_lds(10, 13, XR)
            for s in range(0, 18, 2):
                a(f"ds_read2_b32 v[{XR+s}:{XR+s+1}], v14 offset0:{4*s} offset1:{4*s+4}")
            a("v_lshlrev_b32 v13, 5, v1\nv_lshl_add_u32 v13, v2, 4, v13")
            a("s_waitcnt lgkmcnt(0)")
            gemv18(younger)
            self.fold2(D, A0)
            if low:
                for r in range(4):
                    a(f"v_and_b32 v{A1+r}, 0xffffff00, v{D+r}")
                for r in range(4):
                    a(f"v_sub_f32 v{A1+r}, v{D+r}, v{A1+r}")
            self.tag4(D, vT)
            a("s_mov_b64 exec, s[78:79]")
            a(f"buffer_store_dwordx4 v[{D}:{D+3}], v13, s[{SW}:{SW+3}], s70 offen sc1")
            if low:
                self.tag4(A1, vT)
                a(f"buffer_store_dwordx4 v[{A1}:{A1+3}], v13, s[{SW}:{SW+3}], s72 offen sc1")
            a("s_mov_b64 exec, -1")

        def cold_tiles():
            a.label("L_tile_a")
            a("s_mov_b32 s78, 0x00ff00ff\ns_mov_b32 s79, 0")
            a(f"s_mul_i32 s71, s46, 384\ns_add_u32 s71, s71, {A_XS}")
            a(f"s_mul_i32 s38, s{S_X}, 18\ns_add_u32 s45, s45, s38\ns_sub_u32 s45, s45, 2")
            a("s_waitcnt lgkmcnt(0)\ns_barrier")
            self.ws_setup()
            self.tag_setup(vT)
            self.sel_setup(SEL, 13, 14, 15)
            self.lds_wait(A_GO, 1, 11, 14, 4, "L_go1")
            a("s_mov_b32 s44, 1")
            a.label("L_tile")
            a("v_lshrrev_b32 v3, 3, v1\nv_lshl_add_u32 v3, v2, 1, v3\nv_and_b32 v4, 7, v1\nv_lshlrev_b32 v4, 4, v4")
            self.srd(SA, P_WM, 576 * 6912)
            a("s_and_b32 s46, s45, 3\ns_lshr_b32 s45, s45, 2\ns_add_u32 s45, s45, 18")
            self.srd(SC, P_C, 1152)
            tile_loads(self.opt.get("dt", 18))
            tile_gemv(0, False, "s71")
            self.in_w = False
            self.stamp(9)
            self.in_w = True
            a("s_cmp_eq_u32 s44, 2\ns_cbranch_scc1 L_qred1")
            a(f"s_sub_u32 s45, s{S_U}, 9\ns_sub_u32 s46, s{S_WAVE}, 4\ns_branch L_mlpw_noinit")
        self.cold.append(cold_tiles)

        def common_setup():
            self.tag_setup(vT)
            self.sel_setup(SEL, 13, 14, 15)
            self.tagbyte(TB, 2, vT)
            a(f"v_lshlrev_b32 v{VCOL}, 2, v8")

        def wo_loads(dep):
            a(f"v_mul_u32_u24 v{VWO}, 1152, v2\nv_bfe_u32 v6, v0, 3, 1\nv_mul_u32_u24 v6, {32*1152}, v6\nv_and_b32 v7, 7, v1")
            a(f"v_lshl_add_u32 v6, v7, 4, v6\nv_add_u32 v{VWO}, v{VWO}, v6")
            a(f"s_lshl_b32 s73, s{S_X}, 3\ns_add_u32 s73, s73, s{S_WAVE}\ns_mul_i32 s73, s73, {64*1152}\ns_lshl_b32 s39, s{S_U}, 7\ns_add_u32 s73, s73, s39")
            self.srd(12, P_WO, 4096 * 1152)
            for s in range(8):
                r = WO + 4 * s
                if s >= dep:
                    a(f"s_waitcnt vmcnt({dep-1})")
                a(f"buffer_load_dwordx4 v[{r}:{r+3}], v{VWO}, s[12:15], s73 offen nt")
                if s < 7:
                    a(f"s_add_u32 s73, s73, {4 * 1152}")

        a.section("wq0")
        a.label("L_wq")
        self.in_w = True
        if not self.opt.get('nopf'):
            a(f"s_lshl_b32 s38, s{S_U}, 2\ns_add_u32 s38, s38, s{S_WAVE}\ns_cmp_eq_u32 s38, 32\ns_cbranch_scc0 L_wq_nopf")
            self.code_prefetch(MB, 13, 3)
            a.label("L_wq_nopf")
        a(f"s_mul_i32 s69, s{S_U}, {72*8192}\ns_lshl_b32 s70, s{S_X}, 10\ns_add_u32 s69, s69, s70\ns_lshl_b32 s70, s{S_WAVE}, 8\ns_add_u32 s69, s69, s70")
        a("v_lshlrev_b32 v5, 13, v2\nv_lshl_add_u32 v5, v1, 4, v5")
        a("s_waitcnt lgkmcnt(0)")
        self.fstamp(5)
        self.srd(SB, P_WQ, 576 * 8192)
        self.ws_setup()
        a("s_barrier")
        a(f"s_cmp_lt_u32 s{S_U}, 8\ns_cbranch_scc0 L_wq_none")
        DQ = self.opt.get("dq", 5)
        for s in range(18):
            r = MB + 4 * s
            dq = DQ if s < self.opt.get("nq", 18) else self.opt.get("dq2", 12)
            if s >= dq:
                a(f"s_waitcnt vmcnt({dq-1})")
            a(f"buffer_load_dwordx4 v[{r}:{r+3}], v5, s[{SB}:{SB+3}], s69 offen nt")
            if s < 17:
                a(f"s_add_u32 s69, s69, {4*8192}")
            if s == DQ - 1:
                a("s_branch L_wq1")
                a.section("wq1")
                a.label("L_wq1")
            if s == self.opt.get("gow", 10):
                a(f"v_mov_b32 v6, 1\nv_mov_b32 v7, {W_GO}\nds_write_b32 v7, v6")
        self.stamp(1)
        common_setup()
        a(f"s_lshl_b32 s69, s{S_X}, 3\ns_add_u32 s69, s69, s{S_U}\ns_lshl_b32 s69, s69, 12\ns_lshl_b32 s38, s{S_WAVE}, 9\ns_add_u32 s69, s69, s38\ns_add_u32 s69, s69, {QP}")
        a("v_lshrrev_b32 v14, 1, v2\nv_lshlrev_b32 v14, 11, v14\nv_lshl_add_u32 v14, v1, 5, v14\nv_and_b32 v15, 1, v2\nv_lshl_add_u32 v14, v15, 4, v14")
        a(f"v_lshlrev_b32 v13, 2, v2\nv_add_u32 v13, {W_HS}, v13")
        a("s_mov_b32 s76, 0\ns_mov_b32 s77, -1\ns_setprio 2")
        self.lds_wait(W_HF, 1, 9, 10, 1, "L_hf")
        for s in range(0, 18, 2):
            a(f"ds_read2_b32 v[{XR+s}:{XR+s+1}], v13 offset0:{4*s} offset1:{4*s+4}")
        a(f"ds_read_b32 v9, v9 offset:{W_XF-W_HF}")
        a("s_waitcnt lgkmcnt(0)\nv_readfirstlane_b32 s75, v9")
        self.fstamp(9)
        gemv18(0)
        for r in range(4):
            a(f"v_and_b32 v{A1+r}, 0xffffff00, v{D+r}")
        for r in range(4):
            a(f"v_cndmask_b32 v{A1+r}, 0, v{A1+r}, s[76:77]")
        for r in range(4):
            a(f"v_sub_f32 v{D+r}, v{D+r}, v{A1+r}")
        self.tag4(D, vT)
        if self.fast:
            a("s_cmp_lg_u32 s75, 0\ns_cbranch_scc0 L_w_qslow")
            a(f"buffer_store_dwordx4 v[{D}:{D+3}], v14, s[{SW}:{SW+3}], s69 offen")
            a.label("L_w_qst")

            def cold_qs():
                a.label("L_w_qslow")
                a(f"buffer_store_dwordx4 v[{D}:{D+3}], v14, s[{SW}:{SW+3}], s69 offen sc1\ns_branch L_w_qst")
            self.cold.append(cold_qs)
        else:
            a(f"buffer_store_dwordx4 v[{D}:{D+3}], v14, s[{SW}:{SW+3}], s69 offen sc1")
        self.fstamp(8)
        a(f"v_mov_b32 v9, {W_QS}\nv_mov_b32 v10, 1\ns_mov_b64 exec, 1\nds_add_u32 v9, v10\ns_mov_b64 exec, -1")
        a("s_setprio 0\ns_branch L_w_wo")

        def cold_noq():
            a.label("L_wq_none")
            common_setup()
            a.label("L_qred")
            if self.opt.get("c3", 0):
                a(f"s_mul_i32 s38, s{S_X}, 3\ns_add_u32 s38, s38, s{S_WAVE}\ns_sub_u32 s38, s38, 5")
                a(f"s_cmp_ge_u32 s{S_WAVE}, 5\ns_cbranch_scc0 L_qred1\ns_cmp_lt_u32 s38, 18\ns_cbranch_scc0 L_qred1")
                a("s_lshr_b32 s45, s38, 1\ns_lshl_b32 s45, s45, 4\ns_and_b32 s38, s38, 1\ns_add_u32 s45, s45, s38\ns_add_u32 s45, s45, 6")
                a(f"s_mul_i32 s71, s{S_WAVE}, 384\ns_add_u32 s71, s71, {3584 - 5 * 384}")
                if self.opt.get("c3") == 2:
                    self.lds_wait(W_QS, 1, 9, 10, 2, "L_qst")
                a("s_mov_b32 s44, 2\ns_branch L_tile")
            a.label("L_qred1")
            a(f"s_lshl_b32 s70, s{S_X}, 15\ns_lshl_b32 s38, s{S_WAVE}, 8\ns_add_u32 s70, s70, s38\ns_add_u32 s70, s70, {QP}\ns_add_u32 s71, s70, 16384")
            a("v_lshlrev_b32 v12, 12, v2\nv_lshl_add_u32 v12, v1, 4, v12")
            a(f"s_lshl_b32 s47, s{S_X}, 11\ns_add_u32 s47, s47, s38\ns_add_u32 s47, s47, {QB}")
            R = 24
            ql = [f"buffer_load_dwordx4 v[{R+4*k}:{R+4*k+3}], v12, s[{SW}:{SW+3}], s{70 + (k & 1)} offen offset:{2048*(k >> 1)} sc1" for k in range(4)]
            self.lds_wait(W_QS, 1, 9, 10, 4, "L_qsr")
            for t in ql:
                a(t)
            a(f"s_cmp_eq_u32 s{S_WAVE}, 6\ns_cbranch_scc0 L_qred2")
            a(f"s_sleep {self.opt.get('xdel', 24)}")
            a(f"v_min_u32 v13, 8, v0\nv_lshlrev_b32 v13, 7, v13\ns_lshl_b32 s74, s{S_X}, 11\ns_add_u32 s74, s74, {XI}")
            self.xi_check(HG, 13, 74, 75, 14)
            a(f"v_mov_b32 v13, 0\nv_mov_b32 v14, s75\nds_write_b32 v13, v14 offset:{W_XF}\nv_mov_b32 v14, 1\nds_write_b32 v13, v14 offset:{W_GO}")
            a.label("L_qred2")
            self.lds_wait(W_GO, 1, 9, 10, 8, "L_gor")
            a(f"v_mov_b32 v9, {W_XF}\nds_read_b32 v9, v9")
            a("s_waitcnt lgkmcnt(0)\nv_readfirstlane_b32 s75, v9")
            self.poll(ql, [R + 4 * k for k in range(4)], [], None, 15, sleep=self.opt.get("rsleep", 1))
            for r in (0, 2, 8, 10):
                a(f"v_pk_add_f32 v[{R+r}:{R+r+1}], v[{R+r}:{R+r+1}], v[{R+4+r}:{R+5+r}]")
            for r in (0, 2):
                a(f"v_pk_add_f32 v[{R+r}:{R+r+1}], v[{R+r}:{R+r+1}], v[{R+8+r}:{R+9+r}]")
            self.rscatter(R)
            self.rnd1(R)
            a(f"v_or3_b32 v{R}, v{R}, v{TB}, s75")
            a(f"buffer_store_dword v{R}, v{VCOL}, s[{SW}:{SW+3}], s47 offen")
            self.stamp(4)
            if self.opt.get("front"):
                a(f"s_mov_b32 s{STB(6)}, s{S_CNT}")
            a(f"v_mov_b32 v9, {W_HF}\nv_mov_b32 v10, 1\ns_mov_b64 exec, 1\nds_add_u32 v9, v10\ns_mov_b64 exec, -1")
            self.lds_wait(W_HF, 8, 11, 14, 1, "L_hf8r")
            wo_loads(8)
            a("s_waitcnt vmcnt(0)")
            a(f"buffer_store_dword v{R}, v{VCOL}, s[{SW}:{SW+3}], s47 offen sc1")
            a("s_branch L_w_wod")
        self.cold.append(cold_noq)

        a.section("wo0")
        a.label("L_wo0")
        a("v_lshrrev_b32 v3, 3, v1\nv_lshl_add_u32 v3, v2, 1, v3\nv_and_b32 v4, 7, v1\nv_lshlrev_b32 v4, 4, v4")
        a(f"s_mul_i32 s45, s{S_X}, 9\ns_add_u32 s45, s45, s{S_U}\ns_and_b32 s46, s45, 3\ns_lshr_b32 s45, s45, 2")
        a("v_mov_b32 v6, 0\nv_mov_b32 v10, 0\nv_mov_b32 v11, 0\nv_mov_b32 v12, 0\nv_mov_b32 v13, 0")
        a(f"s_cmp_eq_u32 s{S_WAVE}, 7\ns_cbranch_scc0 L_wo_noinit\nds_write_b128 v6, v[10:13] offset:{W_HF}")
        a.label("L_wo_noinit")
        a("s_waitcnt lgkmcnt(0)")
        self.srd(SA, P_WM, 576 * 6912)
        a(f"s_cmp_eq_u32 s{S_WAVE}, 4\ns_cbranch_scc0 L_w_nom")
        self.srd(SC, P_C, 1152)
        tile_loads()
        a.label("L_w_nom")
        a(f"s_cmp_eq_u32 s{S_WAVE}, 5\ns_cbranch_scc0 L_w_nox")
        self.srd(SC, P_X, 1152)
        a("v_lshlrev_b32 v6, 4, v0\nv_lshlrev_b32 v7, 2, v0")
        a(f"buffer_load_dwordx4 v[{XA}:{XA+3}], v6, s[{SC}:{SC+3}], 0 offen")
        a(f"buffer_load_dword v{XB}, v7, s[{SC}:{SC+3}], 0 offen offset:1024")
        a("v_and_b32 v9, 1, v1\nv_lshl_add_u32 v9, v9, 2, v2\nv_add_u32 v9, 64, v9")
        a(f"s_mul_i32 s38, s{S_U}, 144\nv_lshlrev_b32 v6, 1, v8\nv_lshlrev_b32 v7, 1, v9")
        a(f"buffer_load_ushort v{XO}, v6, s[{SC}:{SC+3}], s38 offen\nbuffer_load_ushort v{XO+1}, v7, s[{SC}:{SC+3}], s38 offen")
        a.label("L_w_nox")
        self.ws_setup()
        a("s_barrier\ns_branch L_wo1")
        a.section("wo1")
        a.label("L_wo1")
        common_setup()
        a(f"s_cmp_eq_u32 s{S_WAVE}, 5\ns_cbranch_scc1 L_w_ln")
        a(f"s_cmp_eq_u32 s{S_WAVE}, 4\ns_cbranch_scc0 L_w_67")
        a("s_setprio 3\ns_getreg_b32 s38, hwreg(HW_REG_XCC_ID, 0, 4)\ns_lshl_b32 s38, s38, 8")
        a(f"v_mov_b32 v{HG}, s38\nv_mov_b32 v{HG+1}, 0\nv_mov_b32 v{HG+2}, 0\nv_mov_b32 v{HG+3}, 0")
        self.tag4(HG, vT)
        a(f"s_lshl_b32 s38, s{S_X}, 4\ns_add_u32 s38, s38, s{S_U}\ns_lshl_b32 s38, s38, 7\ns_add_u32 s38, s38, {XI}")
        a("v_lshlrev_b32 v13, 4, v0\ns_mov_b64 exec, 0xff")
        a(f"buffer_store_dwordx4 v[{HG}:{HG+3}], v13, s[{SW}:{SW+3}], s38 offen sc1")
        a("s_mov_b64 exec, -1")
        tile_gemv(1, True, "0")
        self.stamp(2)
        a(f"s_setprio 0\ns_cmp_lt_u32 s{S_U}, 8\ns_cbranch_scc0 L_w_m8")
        a.label("L_w_wo")
        self.lds_wait(W_QS, self.opt.get("qs", 4), 11, 14, 2, "L_qs")
        wo_loads(self.opt.get("dw", 4))
        a.label("L_w_wod")

        def cold_front():
            a.label("L_w_m8")
            a(f"v_mov_b32 v9, {W_QS}\nv_mov_b32 v10, 1\nds_write_b32 v9, v10\ns_branch L_qred")
            a.label("L_w_67")
            a(f"s_cmp_lt_u32 s{S_U}, 8\ns_cbranch_scc0 L_qred")
            a(f"s_cmp_eq_u32 s{S_WAVE}, 6\ns_cbranch_scc0 L_w_wo")
            self.lds_wait(W_GO, 1, 11, 14, 4, "L_gow6")
            a(f"v_min_u32 v13, 8, v0\nv_lshlrev_b32 v13, 7, v13\ns_lshl_b32 s74, s{S_X}, 11\ns_add_u32 s74, s74, {XI}")
            self.xi_check(HG, 13, 74, 75, 14)
            a(f"v_mov_b32 v13, 0\nv_mov_b32 v14, s75\nds_write_b32 v13, v14 offset:{W_XF}")
            a("s_branch L_w_wo")
            a.label("L_w_ln")
            a(f"s_cmp_lt_u32 s{S_U}, 8\ns_cbranch_scc0 L_qred")
            a("s_setprio 3\ns_waitcnt vmcnt(0)")
            U = 16
            for k in range(5):
                src = XA + k if k < 4 else XB
                a(f"v_lshlrev_b32 v{U+2*k}, 16, v{src}\nv_and_b32 v{U+2*k+1}, 0xffff0000, v{src}")
            a(f"v_add_f32 v10, v{U}, v{U+1}\nv_mul_f32 v11, v{U}, v{U}\nv_fmac_f32 v11, v{U+1}, v{U+1}")
            for k in range(2, 10):
                a(f"v_add_f32 v10, v10, v{U+k}\nv_fmac_f32 v11, v{U+k}, v{U+k}")
            self.row_all("v_add_f32", [10, 11])
            self.xrow_all("v_add_f32", [10, 11], [12, 13])
            a(f"v_mul_f32 v10, {hx(f2u(1.0/576))}, v10\nv_mul_f32 v11, {hx(f2u(1.0/576))}, v11\nv_fma_f32 v11, -v10, v10, v11")
            self.rnd2(10, 11, 12)
            a(f"v_add_f32 v11, {hx(f2u(1e-5))}, v11")
            self.rnd1(11)
            a("v_sqrt_f32 v11, v11")
            self.rnd1(11)
            a("v_rcp_f32 v11, v11")
            a(f"v_lshlrev_b32 v{XO}, 16, v{XO}\nv_lshlrev_b32 v{XO+1}, 16, v{XO+1}")
            a(f"v_sub_f32 v{XO}, v{XO}, v10\nv_sub_f32 v{XO+1}, v{XO+1}, v10")
            self.rnd2(XO, XO + 1, 12)
            a(f"v_mul_f32 v{XO}, v{XO}, v11\nv_mul_f32 v{XO+1}, v{XO+1}, v11")
            self.rnd2(XO, XO + 1, 12)
            a(f"s_mul_i32 s38, s{S_U}, 288\ns_add_u32 s70, s38, {MP}\ns_add_u32 s71, s38, {ML}")
            a(f"v_mul_u32_u24 v12, {MPS}, v2\nv_lshl_add_u32 v12, v1, 4, v12\nv_mul_u32_u24 v13, 4608, v2\nv_lshl_add_u32 v13, v1, 4, v13")
            a("v_and_b32 v14, 1, v1\nv_lshlrev_b32 v14, 4, v14\nv_bfe_u32 v15, v1, 1, 1\nv_mul_u32_u24 v15, 2304, v15\nv_add3_u32 v14, v14, v15, 64")
            a(f"v_add_u32 v14, 192, v14\nv_mul_u32_u24 v15, {MPS}, v2\nv_mul_u32_u24 v10, 4608, v2\nv_add_u32 v10, {ML-MP}, v10")
            a("v_and_b32 v11, 4, v1\nv_cmp_ne_u32 vcc, 0, v11\nv_cndmask_b32 v15, v15, v10, vcc\nv_add_u32 v14, v14, v15")
            a(f"v_add_u32 v10, {W_HS}, v{VCOL}")
            if self.opt.get("hgo", 1):
                self.lds_wait(W_GO, 1, 11, 9, 2, "L_gow5")
            a(f"v_mov_b32 v11, {W_HF}\nv_mov_b32 v9, 1")
            self.fstamp(8)
            H2 = 16

            def hloads(R):
                a(f"buffer_load_dwordx4 v[{R}:{R+3}], v12, s[{SW}:{SW+3}], s70 offen sc1")
                a(f"buffer_load_dwordx4 v[{R+4}:{R+7}], v12, s[{SW}:{SW+3}], s70 offen offset:2304 sc1")
                a(f"buffer_load_dwordx4 v[{R+8}:{R+11}], v13, s[{SW}:{SW+3}], s71 offen sc1")
                a(f"buffer_load_dwordx4 v[{R+12}:{R+15}], v13, s[{SW}:{SW+3}], s71 offen offset:2304 sc1")
                a(f"buffer_load_dwordx4 v[{R+16}:{R+19}], v14, s[{SW}:{SW+3}], s70 offen sc1")
            hloads(HG)
            a(f"s_sleep {self.opt.get('hgap', 8)}")
            hloads(H2)
            a(f"s_mov_b32 s{S_CNT}, 0")
            a.label("L_h_loop")
            self.clean([HG + 4 * k for k in range(5)], [], None, 15, waits=[9, 8, 7, 6, 5])
            a("s_cbranch_vccz L_h_ok")
            hloads(HG)
            self.clean([H2 + 4 * k for k in range(5)], [], None, 15, waits=[9, 8, 7, 6, 5])
            a("s_cbranch_vccz L_h_ok2")
            hloads(H2)
            a(f"s_add_u32 s{S_CNT}, s{S_CNT}, 1\ns_cmp_lt_u32 s{S_CNT}, {SPIN_MAX}\ns_cbranch_scc1 L_h_loop")
            for lab, R in (("L_h_ok2", H2), ("L_h_ok", HG)):
                a.label(lab)
                self.stamp(3)
                if self.opt.get("front"):
                    a(f"s_mov_b32 s{STB(6)}, s{S_CNT}")
                for r in range(4):
                    self.dpp("v_add_f32", R + 16 + r, R + 16 + r, R + 16 + r, "row_ror:12")
                for r in range(0, 8, 2):
                    a(f"v_pk_add_f32 v[{R+r}:{R+r+1}], v[{R+r}:{R+r+1}], v[{R+8+r}:{R+9+r}]")
                for k in (16, 0, 4):
                    self.rscatter(R + k)
                sA, cA, sB, cB = R, R + 4, R + 16, R + 17
                self.dpp("v_mov_b32", cB, sB, None, "row_ror:14")
                self.rnd2(cA, cB, 14)
                self.rnd2(sA, sB, 15)
                a(f"v_add_f32 v{cA}, 1.0, v{cA}\nv_add_f32 v{cB}, 1.0, v{cB}")
                self.rnd2(cA, cB, 14)
                a(f"v_mul_f32 v{cA}, v{cA}, v{XO}\nv_mul_f32 v{cB}, v{cB}, v{XO+1}")
                self.rnd2(cA, cB, 14)
                a(f"v_add_f32 v{cA}, v{cA}, v{sA}\nv_add_f32 v{cB}, v{cB}, v{sB}")
                a(f"v_cvt_pk_bf16_f32 v{cA}, v{cA}, v{cA}\nv_cvt_pk_bf16_f32 v{cB}, v{cB}, v{cB}")
                a(f"ds_write_b32 v10, v{cA}\nds_write_b32 v10, v{cB} offset:256\nds_write_b32 v11, v9")
                if lab == "L_h_ok2":
                    a("s_branch L_h_done")
            a.label("L_h_done")
            a("s_setprio 0\ns_branch L_w_wo")
        self.cold.append(cold_front)

        a(f"s_lshr_b32 s38, s{S_WAVE}, 2\ns_lshl_b32 s39, s{S_X}, 1\ns_add_u32 s38, s38, s39\ns_mul_i32 s38, s38, {12*OPSLOT}")
        a(f"s_add_u32 s38, s38, {OP}\ns_and_b32 s39, s{S_WAVE}, 3\ns_lshl_b32 s70, s39, 8\ns_add_u32 s70, s70, s38")
        a("s_lshr_b32 s39, s39, 1\ns_lshl_b32 s39, s39, 6\ns_add_u32 s71, s38, s39\ns_add_u32 s71, s71, 1024")
        a(f"s_add_u32 s72, s70, {4*OPSLOT}\ns_add_u32 s73, s70, {8*OPSLOT}")
        a(f"v_mul_u32_u24 v10, {OPSLOT}, v2\nv_min_u32 v11, 2, v1\nv_mul_u32_u24 v11, {4*OPSLOT}, v11\nv_add_u32 v11, v11, v10\nv_lshl_add_u32 v10, v1, 4, v10")
        a(f"s_lshl_b32 s38, s{S_WAVE}, 8\ns_add_u32 s38, s38, {W_RED2}")
        a(f"v_lshlrev_b32 v{VRW}, 5, v1\nv_lshl_add_u32 v{VRW}, v2, 4, v{VRW}\nv_add_u32 v{VRW}, s38, v{VRW}")
        a(f"v_lshlrev_b32 v{VRR}, 4, v0\nv_add_u32 v{VRR}, {W_RED2}, v{VRR}")
        a(f"s_mul_i32 s69, s{S_X}, 2304\ns_lshl_b32 s39, s{S_U}, 8\ns_add_u32 s69, s69, s39")
        if self.opt.get("apr", 1):
            a(f"s_mul_i32 s39, s{S_WAVE}, 18432\ns_add_u32 s69, s69, s39\ns_add_u32 s69, s69, {APR}")
        else:
            a(f"s_add_u32 s69, s69, {AP}")
        a("s_mov_b32 s76, 0x00070007\ns_mov_b32 s77, 0x00070007\ns_mov_b32 s74, 0xffffff00")
        self.stamp(5)
        oloads = [f"buffer_load_dwordx4 v[{OG+4*t}:{OG+4*t+3}], v10, s[{SW}:{SW+3}], s{(70, 72, 73)[t]} offen sc1" for t in range(3)]
        for t in oloads:
            a(t)
        self.poll([f"buffer_load_dwordx4 v[{ST}:{ST+3}], v11, s[{SW}:{SW+3}], s71 offen sc1"], [ST], [], None, 14, sleep=2)
        quad = ("quad_perm:[1,0,3,2]", "quad_perm:[2,3,0,1]")
        a(f"v_mov_b32 v14, v{ST}")
        self.row_all("v_max_f32", [14], quad)
        self.xrow_all("v_max_f32", [14], [15])
        a(f"v_sub_f32 v{ST}, v{ST}, v14\nv_mul_f32 v{ST}, {hx(f2u(LOG2E))}, v{ST}\nv_exp_f32 v{ST}, v{ST}")
        a(f"v_cndmask_b32 v{ST}, 0, v{ST}, s[76:77]\nv_mul_f32 v{ST+1}, v{ST}, v{ST+1}")
        self.row_all("v_add_f32", [ST + 1], quad)
        self.xrow_all("v_add_f32", [ST + 1], [15])
        a(f"v_rcp_f32 v{ST+1}, v{ST+1}\nv_mul_f32 v{ST}, v{ST}, v{ST+1}")
        for t in range(3):
            self.dpp("v_mov_b32", ST + 1 + t, ST, None, f"row_newbcast:{t}")
        self.poll(oloads, [OG + 4 * k for k in range(3)], [], None, 14)
        self.stamp(6)
        for r in range(4):
            a(f"v_mul_f32 v{OG+r}, v{ST+1}, v{OG+r}")
        for t in (1, 2):
            for r in range(4):
                a(f"v_fmac_f32 v{OG+r}, v{ST+1+t}, v{OG+4*t+r}")
        self.rscatter(OG)
        self.dpp("v_mov_b32", 15, OG, None, "row_ror:8")
        a(f"v_cvt_pk_bf16_f32 v14, v{OG}, v15")
        XS_ = (16, 17)
        self.dpp("v_mov_b32", 16, 14, None, "row_newbcast:0")
        self.dpp("v_mov_b32", 17, 14, None, "row_newbcast:1")
        self.diag(A0, 16, SEL)
        for s in range(8):
            if s + 1 < 8:
                self.diag(AS_[(s + 1) & 1], XS_[(s + 1) & 1], SEL)
            self.mfma(D, AS_[s & 1], WO + 4 * s, s == 0)
            if s + 2 < 8:
                self.dpp("v_mov_b32", XS_[s & 1], 14, None, f"row_newbcast:{s+2}")
        self.fold2(D, A0)
        a("s_mov_b64 exec, s[78:79]")
        a(f"ds_write_b128 v{VRW}, v[{D}:{D+3}]")
        a("s_mov_b64 exec, -1\ns_waitcnt lgkmcnt(0)\ns_barrier")
        if not self.opt.get("apr", 1):
            a(f"s_cmp_eq_u32 s{S_WAVE}, 7\ns_cbranch_scc0 L_w_fin")
        a(f"ds_read_b128 v[16:19], v{VRR}\nds_read_b128 v[20:23], v{VRR} offset:1024\ns_waitcnt lgkmcnt(0)")
        a("v_pk_add_f32 v[16:17], v[16:17], v[20:21]\nv_pk_add_f32 v[18:19], v[18:19], v[22:23]")
        self.rscatter(16)
        a(f"v_and_or_b32 v16, v16, s74, v{TB}")
        a(f"buffer_store_dword v16, v{VCOL}, s[{SW}:{SW+3}], s69 offen sc1")
        self.stamp(7)
        a.label("L_w_fin")
        a(f"s_cmp_ge_u32 s{S_WAVE}, 6\ns_cbranch_scc1 L_w_exit")
        a("v_and_b32 v12, 3, v0")
        self.tagbyte(13, 12, vT)
        if self.opt.get("fmap", 1):
            a(f"s_mul_i32 s70, s{S_X}, 9\ns_add_u32 s70, s70, s{S_U}\ns_lshl_b32 s70, s70, 5")
        else:
            a(f"s_lshl_b32 s70, s{S_U}, 8\ns_lshl_b32 s39, s{S_X}, 5\ns_add_u32 s70, s70, s39")
        a("v_and_b32 v10, 7, v0\nv_lshlrev_b32 v10, 2, v10\nv_lshrrev_b32 v11, 3, v0\nv_mul_u32_u24 v11, 2304, v11\nv_add_u32 v11, v11, v10")
        self.srd(SC, P_OUT, 1152)
        a("s_lshr_b32 s71, s70, 1\nv_lshrrev_b32 v12, 1, v10")
        a(f"s_cmp_eq_u32 s{S_WAVE}, 0\ns_cbranch_scc0 L_w_fin3")
        self.srd(SA, P_X, 1152)
        self.srd(SB, P_B2, 1152)
        a(f"buffer_load_ushort v20, v12, s[{SA}:{SA+3}], s71 offen\nbuffer_load_ushort v21, v12, s[{SB}:{SB+3}], s71 offen")
        a(f"buffer_load_ushort v25, v12, s[{SC}:{SC+3}], s71 offen")
        a(f"v_bfe_u32 v26, v0, 3, 2\nv_mul_u32_u24 v26, {MPS}, v26\nv_lshrrev_b32 v27, 5, v0\nv_mul_u32_u24 v27, 6912, v27\nv_add3_u32 v26, v26, v27, v10")
        a(f"s_add_u32 s72, s70, {MP+4608}")
        if self.opt.get("apr", 1):
            a(f"s_mul_i32 s74, s{S_X}, 18432\ns_add_u32 s74, s74, s70\ns_add_u32 s74, s74, {APR}")
        else:
            a(f"s_add_u32 s74, s70, {AP}")
        self.poll([f"buffer_load_dword v22, v26, s[{SW}:{SW+3}], s72 offen sc1",
                   f"buffer_load_dword v24, v11, s[{SW}:{SW+3}], s74 offen sc1"], [], [22, 24], 13, 27, sleep=1)
        self.dpp("v_add_f32", 22, 22, 22, "row_ror:8")
        self.dpp("v_add_f32", 24, 24, 24, "row_ror:8")
        a("v_mov_b32 v26, v22\nv_mov_b32 v27, v24\nv_permlane16_swap_b32 v26, v22\nv_permlane16_swap_b32 v27, v24")
        a("v_add_f32 v22, v22, v26\nv_add_f32 v24, v24, v27\nv_mov_b32 v27, v24\nv_permlane32_swap_b32 v22, v23\nv_permlane32_swap_b32 v27, v24")
        a("v_add_f32 v24, v24, v27\nv_lshlrev_b32 v20, 16, v20\nv_lshlrev_b32 v21, 16, v21")
        self.rnd2(22, 23, 26)
        self.rnd1(24)
        a("v_mul_f32 v24, v24, v22")
        self.rnd1(24)
        a("v_add_f32 v24, v24, v20")
        self.rnd1(24)
        if self.opt.get("fg", 0):
            if self.opt.get("fdel", 0):
                a(f"s_sleep {self.opt['fdel']}")
            a(f"v_mov_b32 v26, {W_QS}\nv_mov_b32 v27, 64\nds_write_b32 v26, v27")
        a.label("L_w_fin3")
        if self.opt.get("fg", 0):
            self.lds_wait(W_QS, 64, 26, 27, 2, "L_fg")
        a(f"s_mul_i32 s72, s{S_WAVE}, {24*2304}\ns_add_u32 s72, s72, s70\ns_add_u32 s72, s72, {FP}")
        a(f"s_add_u32 s73, s72, {8*2304}\ns_add_u32 s74, s72, {16*2304}")
        a(f"s_lshl_b32 s38, s{S_WAVE}, 5\ns_add_u32 s38, s38, {W_FIN}\nv_add_u32 v14, s38, v10\nv_add_u32 v15, {W_FIN}, v10")
        self.stamp(8)
        if self.opt.get("fp2", 0):
            def fl(R):
                for k in range(3):
                    a(f"buffer_load_dword v{R+k}, v11, s[{SW}:{SW+3}], s{72+k} offen sc1")
            fl(16)
            a(f"s_sleep {self.opt['fp2']}")
            fl(32)
            a(f"s_mov_b32 s{S_CNT}, 0")
            a.label("L_f_loop")
            self.clean([], [16, 17, 18], 13, 19, waits=[5, 4, 3])
            a("s_cbranch_vccz L_f_ok")
            fl(16)
            self.clean([], [32, 33, 34], 13, 19, waits=[5, 4, 3])
            a("s_cbranch_vccz L_f_ok2")
            fl(32)
            a(f"s_add_u32 s{S_CNT}, s{S_CNT}, 1\ns_cmp_lt_u32 s{S_CNT}, {SPIN_MAX}\ns_cbranch_scc1 L_f_loop")
            a.label("L_f_ok2")
            a("v_add_f32 v35, v32, v33\nv_add_f32 v35, v35, v34\ns_branch L_f_sum")
            a.label("L_f_ok")
            a("v_add_f32 v35, v16, v17\nv_add_f32 v35, v35, v18")
            a.label("L_f_sum")
            a("s_nop 1")
            self.dpp("v_add_f32", 35, 35, 35, "row_ror:8")
            self.xrow_all("v_add_f32", [35], [36])
            FS = 35
        else:
            self.poll([f"buffer_load_dword v{16+k}, v11, s[{SW}:{SW+3}], s{72+k} offen sc1" for k in range(3)], [], [16, 17, 18], 13, 19, sleep=self.opt.get("fsl", 0))
            a("v_add_f32 v16, v16, v17\nv_add_f32 v16, v16, v18")
            FS = 16
        if FS == 16:
            self.dpp("v_add_f32", 16, 16, 16, "row_ror:8")
            self.xrow_all("v_add_f32", [16], [17])
        a(f"s_mov_b64 exec, 0xff\nds_write_b32 v14, v{FS}\ns_waitcnt lgkmcnt(0)\ns_barrier")
        a(f"s_cmp_eq_u32 s{S_WAVE}, 0\ns_cbranch_scc0 L_w_exit")
        for k in range(3):
            a(f"ds_read2_b32 v[{26+2*k}:{27+2*k}], v15 offset0:{16*k} offset1:{16*k+8}")
        a("s_waitcnt lgkmcnt(0)")
        a("v_add_f32 v26, v26, v27\nv_add_f32 v28, v28, v29\nv_add_f32 v30, v30, v31\nv_add_f32 v26, v26, v28\nv_add_f32 v26, v26, v30")
        self.rnd1(26)
        a("v_add_f32 v26, v26, v21")
        self.rnd1(26)
        a("v_mul_f32 v26, v26, v23")
        self.rnd1(26)
        a("v_add_f32 v26, v26, v24\nv_cvt_pk_bf16_f32 v26, v26, v26")
        a(f"buffer_store_short v26, v12, s[{SC}:{SC+3}], s71 offen")
        a("s_cmp_eq_u32 s2, 0\ns_cbranch_scc0 L_w_exit")
        a(f"s_mov_b64 exec, 1\nv_mov_b32 v27, 0\nbuffer_store_dword v{vT}, v27, s[{SW}:{SW+3}], 0 offen offset:{EP}")
        if self.opt.get("pin"):
            a(f"s_add_u32 s100, s100, {self.opt['pin']}")
            a.label("L_pin")
            a("s_memrealtime s[98:99]\ns_waitcnt lgkmcnt(0)\ns_sub_u32 s98, s98, s100\ns_cmp_lt_i32 s98, 0\ns_cbranch_scc1 L_pin")
        a.label("L_w_exit")
        a("s_mov_b64 exec, -1")
        self.stamp(9)
        self.dump_stamps()
        a("s_endpgm")


HEAD = f"""; fused adaLN-conditioned decode block: one persistent launch, 256 workgroups (one per CU), hand-offs through d_ws
; @launch grid=(256,1,1) block=(512,1,1) lds={LDS_BYTES}
.amdgcn_target "amdgcn-amd-amdhsa--gfx950"
.text
.globl {NAME}_kernel
.p2align 8
.type {NAME}_kernel,@function
"""
TAIL = f""".section .rodata,"a"
.p2align 6
.amdhsa_kernel {NAME}_kernel
  .amdhsa_next_free_vgpr 256
  .amdhsa_next_free_sgpr 102
  .amdhsa_accum_offset 256
  .amdhsa_group_segment_fixed_size 0
  .amdhsa_kernarg_size 120
  .amdhsa_user_sgpr_count 2
  .amdhsa_user_sgpr_kernarg_segment_ptr 1
  .amdhsa_system_sgpr_workgroup_id_x 1
  .amdhsa_float_denorm_mode_32 3
.end_amdhsa_kernel
"""


def generate(stamps=False, fast=True, opt=None):
    g = G(stamps, fast, opt)
    body = g.build()
    opt = opt or {}
    L = []
    for ln in body.split("\n"):
        t = ln.strip()
        if t.startswith("buffer_load") and not t.endswith(" nt"):
            if t.endswith("sc1"):
                if opt.get("ntpoll"):
                    ln += " nt"
            elif opt.get("ntsmall"):
                ln += " nt"
        if t.startswith("global_load") and opt.get("ntsmall"):
            ln += " nt"
        if t.startswith("buffer_store") and t.endswith("sc1") and opt.get("ntstore"):
            ln += " nt"
        L.append(ln)
    return HEAD + "\n".join(L) + TAIL


if __name__ == "__main__":
    out = sys.argv[1]
    stamps = "stamps" in sys.argv[2:]
    fast = "nofast" not in sys.argv[2:]
    opt = {}
    for arg in sys.argv[2:]:
        if "=" in arg:
            k, v = arg.split("=")
            opt[k] = int(v) if v.lstrip("-").isdigit() else v
    open(out, "w").write(generate(stamps, fast, opt))
```

```python
import sys, struct, os
sys.path.insert(0, os.path.dirname(os.path.abspath(__file__)))
from asmlib import Asm

NAME = "adaLN_cond__sliding_block_cached__mixer_channel_mlp__decode"


def f2u(x):
    return struct.unpack("<I", struct.pack("<f", x))[0]


def hx(x):
    return "0x%08x" % (x & 0xffffffff)


LOG2E = 1.4426950408889634
EP, XI, MP, ML, QB, AP, OP, FP, QP, STAMP = 0, 933888, 4096, 59392, 77824, 94208, 112640, 333824, 665600, 1 << 20
APR = 1 << 21
W_FIN2 = 3584
EX = 950272
MPS = 3456 * 4
OPSLOT = 1152
A_FLAG, A_GO, A_MG, A_PUB, A_WD = 96, 104, 108, 112, 116
A_CNT, A_NEG, A_ST, A_QL, A_CMB, A_XS, A_F1P, A_U, A_AA, A_BB, A_STAT, A_ZERO = 0, 16, 32, 128, 2176, 6272, 7808, 11904, 14208, 16512, 18816, 19712
W_XS, W_HS, W_RED2, W_FIN, W_HF, W_XF, W_GO, W_QS = 0, 512, 8192, 3072, 3328, 3332, 3336, 3340
LDS_BYTES = 19712 + 1024
SPIN_MAX = 40000

P_X, P_K, P_V, P_WQ, P_WO, P_W1, P_B1, P_W2, P_B2, P_C, P_WM, P_OUT, P_WS = 8, 10, 12, 14, 16, 20, 22, 24, 26, 28, 30, 32, 36
S_WAVE, S_X, S_U, S_T, S_SELA = 40, 41, 42, 43, 44
SA, SB, SC, SW = 48, 52, 56, 60
S_TB = 92
S_BAD = 66
S_CNT = 68


def STB(k):
    return (80, 82, 84, 86, 88, 90, 96, 98, 100, 64)[k]


class G:
    def __init__(self, stamps=False, fast=True, opt=None):
        self.a = Asm()
        self.stamps = stamps
        self.fast = fast
        self.opt = opt or {}
        self.nlab = 0
        self.cold = []
        self.in_w = False

    def lab(self, base):
        self.nlab += 1
        return f"L_{base}_{self.nlab}"

    def srd(self, d, p, size, add=None):
        a = self.a
        if add is None:
            a(f"s_mov_b32 s{d}, s{p}\ns_mov_b32 s{d+1}, s{p+1}")
        else:
            a(f"s_add_u32 s{d}, s{p}, {add}\ns_addc_u32 s{d+1}, s{p+1}, 0")
        a(f"s_mov_b32 s{d+2}, {size}\ns_mov_b32 s{d+3}, 0x20000")

    def fstamp(self, k):
        if self.stamps and self.opt.get("front"):
            self.a(f"s_memrealtime s[{STB(k)}:{STB(k)+1}]")

    def stamp(self, k):
        if self.stamps and not (self.opt.get("front") and k >= 5 and self.in_w):
            self.a(f"s_memrealtime s[{STB(k)}:{STB(k)+1}]")

    def dump_stamps(self):
        if not self.stamps:
            return
        a = self.a
        a("s_waitcnt lgkmcnt(0)")
        a(f"s_lshl_b32 s38, s2, 3\ns_add_u32 s38, s38, s{S_WAVE}\ns_lshl_b32 s38, s38, 6\ns_add_u32 s38, s38, {STAMP}")
        a("s_mov_b64 exec, 1\nv_mov_b32 v2, 0")
        for k in range(10):
            a(f"v_mov_b32 v3, s{STB(k)}")
            a(f"buffer_store_dword v3, v2, s[{SW}:{SW+3}], s38 offen offset:{4*k}")
        a("s_getreg_b32 s39, hwreg(HW_REG_XCC_ID)\nv_mov_b32 v3, s39")
        a(f"buffer_store_dword v3, v2, s[{SW}:{SW+3}], s38 offen offset:40")
        a(f"v_mov_b32 v3, s76\nbuffer_store_dword v3, v2, s[{SW}:{SW+3}], s38 offen offset:44")

    def tag_setup(self, vT):
        a = self.a
        a("s_waitcnt lgkmcnt(0)")
        a(f"s_add_u32 s{S_T}, s{S_T}, 0x01010101")
        for k in range(4):
            a(f"s_mov_b32 s{4+k}, {hx(0x07060500 + k)}")
            a(f"s_bfe_u32 s{S_TB+k}, s{S_T}, {hex(0x80000 + 8 * k)}")
        a(f"v_mov_b32 v{vT}, s{S_T}")

    def tag4(self, d, vT):
        for k in range(4):
            self.a(f"v_perm_b32 v{d+k}, v{d+k}, v{vT}, s{4+k}")

    def tagbyte(self, vd, vsel, vT):
        a = self.a
        a(f"v_lshlrev_b32 v{vd}, 3, v{vsel}\nv_lshrrev_b32 v{vd}, v{vd}, v{vT}\nv_and_b32 v{vd}, 0xff, v{vd}")

    def clean(self, grans, words, vtb, acc, waits=None):
        a = self.a
        regs = []
        pend = []
        first = True

        def fold():
            nonlocal first
            while len(pend) >= (3 if first else 2):
                if first:
                    a(f"v_or3_b32 v{acc}, v{pend[0]}, v{pend[1]}, v{pend[2]}")
                    del pend[:3]
                    first = False
                else:
                    a(f"v_or3_b32 v{acc}, v{acc}, v{pend[0]}, v{pend[1]}")
                    del pend[:2]
        n = 0
        for d in grans:
            if waits:
                a(f"s_waitcnt vmcnt({waits[n]})")
            n += 1
            for k in range(4):
                a(f"v_xor_b32 v{d+k}, s{S_TB+k}, v{d+k}")
                pend.append(d + k)
            fold()
        for d in words:
            if waits:
                a(f"s_waitcnt vmcnt({waits[n]})")
            n += 1
            a(f"v_xor_b32 v{d}, v{vtb}, v{d}")
            pend.append(d)
            fold()
        if first:
            assert len(pend) == 2
            a(f"v_or_b32 v{acc}, v{pend[0]}, v{pend[1]}")
            pend = []
        for r in pend:
            a(f"v_or_b32 v{acc}, v{acc}, v{r}")
        a(f"v_and_b32 v{acc}, 0xff, v{acc}")
        a(f"v_cmp_ne_u32 vcc, 0, v{acc}")

    def sel_setup(self, sel, t0, t1, t2):
        a = self.a
        a(f"v_bfe_u32 v{t0}, v0, 3, 1")
        a(f"v_mul_u32_u24 v{t0}, 0x202, v{t0}\nv_add_u32 v{t0}, 0x100, v{t0}")
        a(f"v_and_b32 v{t1}, 1, v0\nv_lshlrev_b32 v{t1}, 4, v{t1}")
        a(f"v_lshlrev_b32 v{t0}, v{t1}, v{t0}")
        a(f"v_mov_b32 v{t2}, 0x0c0c0000\nv_lshrrev_b32 v{t1}, v{t1}, v{t2}\nv_or_b32 v{t0}, v{t0}, v{t1}")
        a(f"v_bfe_u32 v{t1}, v0, 1, 2\nv_mov_b32 v{t2}, 0x0c0c0c0c")
        for d in range(4):
            a(f"v_cmp_eq_u32 vcc, {d}, v{t1}\nv_cndmask_b32 v{sel+d}, v{t2}, v{t0}, vcc")

    def diag(self, A, x, sel):
        for d in range(4):
            self.a(f"v_perm_b32 v{A+d}, v{x}, v{x}, v{sel+d}")

    def mfma(self, D, A, B, first):
        c = "0" if first else f"v[{D}:{D+3}]"
        self.a(f"v_mfma_f32_16x16x32_bf16 v[{D}:{D+3}], v[{A}:{A+3}], v[{B}:{B+3}], {c}")

    def dpp(self, op, d, s0, s1, ctl, rm=0xf, bm=0xf):
        if s1 is None:
            self.a(f"{op}_dpp v{d}, v{s0} {ctl} row_mask:{hex(rm)} bank_mask:{hex(bm)}")
        else:
            self.a(f"{op}_dpp v{d}, v{s0}, v{s1} {ctl} row_mask:{hex(rm)} bank_mask:{hex(bm)}")

    def xrow_all(self, op, regs, tmps):
        a = self.a
        for sw in ("v_permlane16_swap_b32", "v_permlane32_swap_b32"):
            for r, t in zip(regs, tmps):
                a(f"v_mov_b32 v{t}, v{r}")
            for r, t in zip(regs, tmps):
                a(f"{sw} v{t}, v{r}")
            for r, t in zip(regs, tmps):
                a(f"{op} v{r}, v{r}, v{t}")

    def row_all(self, op, regs, steps=("quad_perm:[1,0,3,2]", "quad_perm:[2,3,0,1]", "row_half_mirror", "row_mirror")):
        for st in steps:
            for r in regs:
                self.dpp(op, r, r, r, st)

    def rscatter(self, c):
        a = self.a
        a(f"v_permlane32_swap_b32 v{c}, v{c+2}\nv_permlane32_swap_b32 v{c+1}, v{c+3}")
        a(f"v_add_f32 v{c}, v{c}, v{c+2}\nv_add_f32 v{c+1}, v{c+1}, v{c+3}")
        a(f"v_permlane16_swap_b32 v{c}, v{c+1}\nv_add_f32 v{c}, v{c}, v{c+1}")

    def rscatter2(self, g0, g1):
        a = self.a
        for c in (g0, g1):
            a(f"v_permlane32_swap_b32 v{c}, v{c+2}\nv_permlane32_swap_b32 v{c+1}, v{c+3}")
        for c in (g0, g1):
            a(f"v_add_f32 v{c}, v{c}, v{c+2}\nv_add_f32 v{c+1}, v{c+1}, v{c+3}")
        for c in (g0, g1):
            a(f"v_permlane16_swap_b32 v{c}, v{c+1}")
        for c in (g0, g1):
            a(f"v_add_f32 v{c}, v{c}, v{c+1}")

    def fold2(self, D, t):
        a = self.a
        for r in range(4):
            a(f"v_permlane32_swap_b32 v{D+r}, v{t+r}")
        for r in range(4):
            self.dpp("v_add_f32", D + r, t + r, D + r, "row_ror:8")

    def rnd2(self, x, y, t):
        a = self.a
        a(f"v_cvt_pk_bf16_f32 v{t}, v{x}, v{y}\nv_lshlrev_b32 v{x}, 16, v{t}\nv_and_b32 v{y}, 0xffff0000, v{t}")

    def rnd1(self, x):
        a = self.a
        a(f"v_cvt_pk_bf16_f32 v{x}, v{x}, v{x}\nv_and_b32 v{x}, 0xffff0000, v{x}")

    def silu_to_lds(self, c, vaddr, t):
        a = self.a
        for k in range(3):
            a(f"v_lshlrev_b32 v{c+k}, 16, v{c+k}")
        KH = struct.unpack("<f", struct.pack("<f", -LOG2E))[0]
        u, w = t + 3, t + 6
        a(f"s_mov_b32 s38, {hx(f2u(KH))}")
        for k in range(3):
            a(f"v_mul_f32 v{t+k}, s38, v{c+k}")
        for k in range(3):
            a(f"v_fma_f32 v{u+k}, v{c+k}, s38, -v{t+k}")
        for k in range(3):
            a(f"v_exp_f32 v{t+k}, v{t+k}")
        for k in range(3):
            a(f"v_fmac_f32 v{u+k}, {hx(f2u(-LOG2E - KH))}, v{c+k}")
        for k in range(3):
            a(f"v_mul_f32 v{u+k}, {hx(f2u(0.6931471805599453))}, v{u+k}")
        for k in range(3):
            a(f"v_min_f32 v{t+k}, {hx(0x7e800000)}, v{t+k}")
        for k in range(3):
            a(f"v_fmac_f32 v{t+k}, v{u+k}, v{t+k}")
        for k in range(3):
            a(f"v_add_f32 v{t+k}, 1.0, v{t+k}")
        for k in range(3):
            a(f"v_rcp_f32 v{u+k}, v{t+k}")
        for k in range(3):
            a(f"v_mul_f32 v{w+k}, v{c+k}, v{u+k}")
        for k in range(3):
            a(f"v_fma_f32 v{c+k}, -v{w+k}, v{t+k}, v{c+k}")
        for k in range(3):
            a(f"v_fma_f32 v{c+k}, v{c+k}, v{u+k}, v{w+k}")
        a(f"v_cvt_pk_bf16_f32 v{t}, v{c}, v{c+1}\nv_cvt_pk_bf16_f32 v{t+1}, v{c+2}, v{c+2}")
        a(f"ds_write_b16 v{vaddr}, v{t}\nds_write_b16_d16_hi v{vaddr}, v{t} offset:128\nds_write_b16 v{vaddr}, v{t+1} offset:256")

    def code_prefetch(self, vd, vt, n):
        a = self.a
        a("s_getpc_b64 s[38:39]")
        lab = self.lab("pc")
        a.label(lab)
        a(f"s_sub_u32 s38, s38, {lab}-{NAME}_kernel\ns_subb_u32 s39, s39, 0")
        a(f"v_lshlrev_b32 v{vt}, 7, v0")
        for k in range(n):
            if k + 1 == n:
                a(f"v_min_u32 v{vt}, L_end-{NAME}_kernel, v{vt}")
            a(f"global_load_dword v{vd+k}, v{vt}, s[38:39]")
            if k + 1 < n:
                a(f"v_add_u32 v{vt}, 8192, v{vt}")

    def build(self):
        a = self.a
        a.raw(f"{NAME}_kernel:")
        self.stamp(0)
        if self.opt.get("pin"):
            a("s_memrealtime s[100:101]")
        a("s_cmp_ge_u32 s2, 256\ns_cbranch_scc1 L_end")
        a("s_load_dwordx16 s[8:23], s[0:1], 0\ns_load_dwordx8 s[24:31], s[0:1], 64")
        a("s_load_dwordx4 s[32:35], s[0:1], 96\ns_load_dwordx2 s[36:37], s[0:1], 112")
        a(f"v_lshrrev_b32 v1, 6, v0\nv_and_b32 v0, 63, v0\nv_readfirstlane_b32 s{S_WAVE}, v1")
        a(f"s_and_b32 s{S_X}, s2, 7\ns_lshr_b32 s{S_U}, s2, 3")
        a("v_and_b32 v1, 15, v0\nv_lshrrev_b32 v2, 4, v0")
        a(f"s_cmp_lt_u32 s{S_U}, 9\ns_cbranch_scc0 L_a")
        a("v_lshl_add_u32 v8, v1, 2, v2")
        a("s_mov_b32 s78, 0x00ff00ff\ns_mov_b32 s79, 0")
        a(f"s_cmp_ge_u32 s{S_WAVE}, 4\ns_cbranch_scc0 L_wq")
        a.section("att0")
        a.label("L_a")
        a(f"s_cmp_ge_u32 s{S_WAVE}, 4\ns_cbranch_scc1 L_mlpw")
        self.att()
        self.mlpw()
        self.s4_and_mlp()
        self.wcu()
        a.section("cold")
        k = 0
        while k < len(self.cold):
            self.cold[k]()
            k += 1
        a.label("L_end")
        a("s_endpgm")
        if self.opt.get("lay") == 1:
            a.section("main")
            a("s_branch L_wo0")
            return a.text(("main", "att0", "wo0", "wq0", "att", "wq1", "wo1", "cold"))
        return a.text(("main", "wo0", "wq0", "att0", "att", "wq1", "wo1", "cold"))

    def ws_setup(self):
        a = self.a
        a(f"s_load_dword s{S_T}, s[{P_WS}:{P_WS+1}], {EP}")
        self.srd(SW, P_WS, 3 << 20)

    def const_addr(self, boff, va, vx):
        a = self.a
        a(f"v_mul_u32_u24 v{va}, {MPS}, v2\nv_lshl_add_u32 v{va}, v1, 4, v{va}\nv_add_u32 v{va}, s{boff}, v{va}")
        a(f"v_lshlrev_b32 v{vx}, 3, v1\nv_lshl_add_u32 v{vx}, v2, 1, v{vx}\ns_lshr_b32 s38, s{boff}, 1\nv_add_u32 v{vx}, s38, v{vx}")

    def const_loads(self, R, va, vx, pre=None):
        a = self.a
        a(f"s_mov_b32 s38, {MP+4608}\ns_mov_b32 s39, {MP+9216}")
        L = [f"buffer_load_dwordx4 v[{R}:{R+3}], v{va}, s[{SW}:{SW+3}], s38 offen sc1",
             f"buffer_load_dwordx4 v[{R+4}:{R+7}], v{va}, s[{SW}:{SW+3}], s38 offen offset:2304 sc1",
             f"buffer_load_dwordx4 v[{R+8}:{R+11}], v{va}, s[{SW}:{SW+3}], s39 offen sc1"]
        if vx is not None:
            L.append(f"buffer_load_ushort v{R+12}, v{vx}, s[{SC}:{SC+3}], 0 offen")
        for t in L:
            if pre:
                pre()
            a(t)

    def xi_check(self, R, va, soff, sdst, t):
        a = self.a
        if not self.fast:
            a(f"s_mov_b32 s{sdst}, 0")
            return
        a(f"buffer_load_dwordx4 v[{R}:{R+3}], v{va}, s[{SW}:{SW+3}], s{soff} offen sc1")
        a(f"s_getreg_b32 s{sdst}, hwreg(HW_REG_XCC_ID, 0, 4)\ns_lshl_b32 s{sdst}, s{sdst}, 8\ns_waitcnt vmcnt(0)")
        for k in range(4):
            a(f"v_xor_b32 v{R+k}, s{S_TB+k}, v{R+k}")
        a(f"v_xor_b32 v{R}, s{sdst}, v{R}\nv_or3_b32 v{t}, v{R+1}, v{R+2}, v{R+3}\nv_or_b32 v{t}, v{t}, v{R}")
        a(f"s_or_b32 s{sdst}, s{sdst}, 0x1000\nv_cmp_ne_u32 vcc, 0, v{t}\ns_cmp_eq_u64 vcc, 0\ns_cselect_b32 s{sdst}, s{sdst}, 0")

    def att(self):
        a = self.a
        KR, VR, Q1, Q2, QA, QM, D, O, SEL, PP, X0, A0, A1 = 8, 104, 200, 204, 208, 216, 224, 236, 240, 244, 247, 248, 252
        vT = 7
        DEP = self.opt.get("dep", 5)
        BUR = self.opt.get("bur", 8)
        DEP0, N0 = self.opt.get("dep0", 5), self.opt.get("n0", 10)
        assert DEP0 <= 5
        def unit36(dst, w):
            a(f"s_min_u32 s69, s{w}, 8\ns_mul_i32 s{dst}, s{w}, 11\ns_add_u32 s{dst}, s{dst}, s69\ns_max_u32 s69, s{w}, 44\ns_min_u32 s69, s69, 52")
            a(f"s_sub_u32 s{dst}, s{dst}, s69\ns_max_i32 s69, s{w}, 0x50\ns_add_u32 s{dst}, s{dst}, s69")
        a(f"s_lshl_b32 s46, s{S_U}, 2\ns_add_u32 s46, s46, s{S_WAVE}\ns_sub_u32 s46, s46, 36")
        unit36(3, 46)
        a(f"s_lshl_b32 s38, s3, 11\ns_lshl_b32 s69, s{S_X}, 24\ns_add_u32 s38, s38, s69")
        a(f"s_cmp_ge_u32 s46, 46\ns_cselect_b32 s69, {2*7340032 - 36*2048}, {7340032 - 36*2048}" if False else
          f"s_cmp_ge_u32 s46, 46\ns_cselect_b32 s47, 1, 0\ns_add_u32 s69, s47, 1\ns_mul_i32 s69, s69, 7340032\ns_add_u32 s38, s38, s69\ns_sub_u32 s38, s38, {36*2048}")
        a("v_lshrrev_b32 v3, 1, v1\nv_lshlrev_b32 v3, 8, v3\nv_and_b32 v4, 1, v1\nv_lshl_add_u32 v3, v4, 6, v3\nv_lshl_add_u32 v3, v2, 4, v3")
        a("s_movk_i32 s70, 0x1000\ns_waitcnt lgkmcnt(0)")
        self.stamp(8)
        self.srd(SA, P_K, 24576, add="s38")

        def late_setup():
            a("s_setprio 2\ns_add_u32 s45, s46, 1")
            unit36(39, 45)
            a(f"s_sub_u32 s3, s39, s3\ns_lshl_b32 s39, s3, 11\ns_sub_u32 s45, s{S_U}, 9")
            a(f"s_lshl_b32 s46, s{S_X}, 1\ns_add_u32 s46, s46, s47")
            for k in range(1, 5):
                a(f"s_movk_i32 s{70+k}, {hex(4096*(k+1))}")
            a("v_mul_u32_u24 v4, 6144, v2\nv_lshl_add_u32 v4, v1, 4, v4")
            a(f"s_and_b32 s69, s{S_WAVE}, 2\ns_lshl_b32 s69, s69, 1\ns_add_u32 s69, s69, {A_FLAG}\nv_mov_b32 v5, s69")
        n = [0]

        def thr():
            dep = DEP0 if n[0] < N0 else (DEP if n[0] < 24 else self.opt.get("depv", 7))
            if n[0] == DEP0:
                if self.opt.get("lay") == 1:
                    a("s_branch L_att1")
                a.section("att")
                a.label("L_att1")
                late_setup()
                a("s_barrier")
            if n[0] >= dep:
                a(f"s_waitcnt vmcnt({dep-1})")
            n[0] += 1
        for k in range(12):
            if k == 3:
                self.srd(SB, P_V, "s39", add="s38")
                self.ws_setup()
                self.srd(SC, P_X, 1152)
            if k == 7:
                self.tag_setup(vT)
                self.sel_setup(SEL, 200, 201, 202)
            for lvl, at in ((1, self.opt.get("go1", 7)), (2, self.opt.get("go", 8))):
                if k == at:
                    a(f"v_mov_b32 v6, {lvl}\nv_mov_b32 v200, {A_GO}\nds_max_u32 v200, v6")
            if k >= 10:
                a(f"s_cmp_gt_u32 s3, {k}\ns_cbranch_scc0 L_att_k11")
            for lam in range(2):
                r = KR + 8 * k + 4 * lam
                so = "0" if k < 2 else f"s{69 + k // 2}"
                thr()
                a(f"buffer_load_dwordx4 v[{r}:{r+3}], v3, s[{SA}:{SA+3}], {so} offen offset:{(k & 1) * 2048 + lam * 128} nt")
        a.label("L_att_k11")
        after = {t: 23 - t for t in range(24)}

        def vload(t):
            r = VR + 4 * t
            so = "0" if t < 16 else "s70"
            a(f"buffer_load_dwordx4 v[{r}:{r+3}], v4, s[{SB}:{SB+3}], {so} offen offset:{(t & 15) * 256} nt")
        VC = self.opt.get("vc", 17)
        for t in range(VC):
            thr()
            vload(t)
            if t == 2:
                a(f"s_and_b32 s38, s{S_WAVE}, 2\ns_lshl_b32 s38, s38, 8\ns_add_u32 s38, s38, {A_QL}")
                a("v_bfe_u32 v3, v0, 1, 1\nv_lshlrev_b32 v3, 8, v3\nv_and_b32 v6, 1, v0\nv_lshl_add_u32 v3, v6, 6, v3")
                a(f"v_lshl_add_u32 v3, v2, 4, v3\nv_add_u32 v3, s38, v3\nv_lshrrev_b32 v6, 2, v1\nv_mov_b32 v200, {A_ZERO}")
                for m in range(4):
                    a(f"v_cmp_eq_u32 vcc, {m}, v6\nv_cndmask_b32 v{PP+m}, v200, v3, vcc")
            if t == 4:
                a("s_cmp_eq_u32 s45, 11\ns_cselect_b32 s72, 2, 4")
                a(f"s_and_b32 s73, s{S_WAVE}, 2\ns_cmp_eq_u32 s45, 11\ns_cselect_b32 s73, s73, 0")
                for e in range(4):
                    a(f"s_add_u32 s38, s73, {e}\ns_lshl_b32 s{8+e}, s38, 10\ns_add_u32 s{8+e}, s{8+e}, {A_CMB}\ns_lshl_b32 s38, s38, 4\ns_add_u32 s{12+e}, s38, {A_ST}")
                    if e >= 2:
                        a(f"s_cmp_eq_u32 s72, 2\ns_cselect_b32 s{8+e}, {A_ZERO}, s{8+e}\ns_cselect_b32 s{12+e}, {A_NEG}, s{12+e}")
                a(f"s_lshl_b32 s16, s{S_WAVE}, 4\ns_add_u32 s16, s16, {A_ST}\ns_lshl_b32 s17, s{S_WAVE}, 10\ns_add_u32 s17, s17, {A_CMB}\ns_lshl_b32 s18, s73, 1")
                a("s_mul_i32 s38, s47, 11\ns_sub_u32 s38, s45, s38\ns_mul_i32 s39, s46, 12\ns_add_u32 s38, s38, s39")
                a(f"s_mul_i32 s74, s38, {OPSLOT}\ns_add_u32 s74, s74, {OP}\ns_sub_u32 s19, s3, 2\ns_sub_u32 s20, s3, 1")
                a("s_mov_b32 s78, 0xaaaaaaaa\ns_mov_b32 s79, 0xaaaaaaaa\nv_mul_u32_u24 v3, 3, v2")
            if t == self.opt.get("mgv", 99):
                a(f"v_mov_b32 v6, 1\nv_mov_b32 v200, {A_MG}\ns_mov_b64 exec, 1\nds_add_u32 v200, v6\ns_mov_b64 exec, -1")
            if t == 5:
                a("s_mov_b32 s21, 0")
            if t == self.opt.get("lead", 99):
                a("s_mov_b32 s21, 1")
            if t == BUR - 1:
                self.stamp(9)
            if BUR - 1 <= t < VC - 1:
                a(f"ds_read_b32 v6, v5\ns_waitcnt lgkmcnt(0)\nv_cmp_ne_u32 vcc, 0, v6\ns_cbranch_vccnz L_bur_{t+1}")
        a(f"s_mov_b32 s{S_CNT}, 0")
        a.label("L_q_wait")
        a(f"ds_read_b32 v6, v5\ns_waitcnt lgkmcnt(0)\nv_cmp_ne_u32 vcc, 0, v6\ns_cbranch_vccnz L_bur_{VC}")
        a(f"s_add_u32 s{S_CNT}, s{S_CNT}, 1\ns_cmp_lt_u32 s{S_CNT}, {SPIN_MAX*16}\ns_cbranch_scc1 L_q_wait\ns_branch L_bur_{VC}")
        for t in range(BUR, 24):
            a.label(f"L_bur_{t}")
            vload(t)
        a.label("L_bur_24")
        self.stamp(1)
        if self.opt.get("mg", -1) < 0 and "mgv" not in self.opt:
            a("s_cmp_eq_u32 s21, 0\ns_cbranch_scc0 L_att_lead")
            self.after_mg = True
            a(f"v_mov_b32 v4, {A_MG}\nv_mov_b32 v5, 1\ns_mov_b64 exec, 1\nds_add_u32 v4, v5\ns_mov_b64 exec, -1")
        a.label("L_att_lead")
        a("v_readfirstlane_b32 s76, v6")

        self.stamp(2)
        QS_ = (208, 216, 200, 248)
        for m in range(4):
            a(f"ds_read_b128 v[{QS_[m]}:{QS_[m]+3}], v{PP+m}\nds_read_b128 v[{QS_[m]+4}:{QS_[m]+7}], v{PP+m} offset:128")
        for m in range(4):
            a(f"s_waitcnt lgkmcnt({6 - 2 * m})" if not self.stamps else "s_waitcnt lgkmcnt(0)")
            for c in range(3):
                k = 3 * m + c
                if k >= 10:
                    a(f"s_cmp_gt_u32 s3, {k}\ns_cbranch_scc0 L_att_m11")
                for lam in range(2):
                    self.mfma(D + 4 * c, QS_[m] + 4 * lam, KR + 8 * k + 4 * lam, m == 0 and lam == 0)
        a.label("L_att_m11")
        S, Y = 8, 12
        a("v_lshlrev_b32 v19, 4, v0\nv_add_u32 v20, s17, v19")
        for e in range(4):
            a(f"v_add_u32 v{24+e}, s{8+e}, v19")
        a("v_lshrrev_b32 v19, 5, v0\nv_lshlrev_b32 v33, 6, v19\nv_lshlrev_b32 v32, 9, v19\nv_lshlrev_b32 v19, 3, v19")
        for c in range(3):
            a(f"v_cndmask_b32 v{Y+c}, v{D+4*c+2}, v{D+4*c+1}, s[78:79]\nv_cndmask_b32 v{S+c}, v{D+4*c}, v{D+4*c+3}, s[78:79]")
        for c in range(3):
            self.dpp("v_add_f32", S + c, Y + c, S + c, "quad_perm:[1,0,3,2]")
        self.rnd2(S, S + 1, Y)
        self.rnd1(S + 2)
        for c in range(3):
            a(f"v_mul_f32 v{S+c}, {hx(f2u(128 ** -0.5))}, v{S+c}")
        self.rnd2(S, S + 1, Y)
        self.rnd1(S + 2)
        a(f"v_cmp_gt_i32 vcc, s19, v3\nv_cmp_gt_i32 s[78:79], s20, v3\nv_mov_b32 v4, 0xff800000")
        a(f"v_cndmask_b32 v{S+2}, v4, v{S+2}, vcc\nv_cndmask_b32 v{S+1}, v4, v{S+1}, s[78:79]")
        MX, LS = 16, 17
        a(f"v_max3_f32 v{MX}, v{S}, v{S+1}, v{S+2}")
        par = ("quad_perm:[2,3,0,1]", "row_ror:4", "row_ror:8")
        self.row_all("v_max_f32", [MX], par)
        self.xrow_all("v_max_f32", [MX], [18])
        for c in range(3):
            a(f"v_sub_f32 v{S+c}, v{S+c}, v{MX}")
        for c in range(3):
            a(f"v_mul_f32 v{S+c}, {hx(f2u(LOG2E))}, v{S+c}")
        for c in range(3):
            a(f"v_exp_f32 v{S+c}, v{S+c}")
        for c in range(3):
            self.dpp("v_mov_b32", Y + c, S + c, None, "quad_perm:[1,0,3,2]")
        for c in range(3):
            a(f"v_cvt_pk_bf16_f32 v{PP+c}, v{S+c}, v{Y+c}")
        self.stamp(3)
        XS_ = (X0, 6)
        AS_ = (A0, A1)
        TS = self.opt.get("ts", 14)
        WS = 35
        self.dpp("v_mov_b32", XS_[0], PP, None, "row_newbcast:0")
        self.dpp("v_mov_b32", XS_[1], PP, None, "row_newbcast:2")
        self.diag(AS_[0], XS_[0], SEL)
        for t in range(24):
            if t == self.opt.get("lsum", 3):
                a(f"v_add_f32 v{LS}, v{S}, v{S+1}\nv_add_f32 v{LS}, v{LS}, v{S+2}")
                a("v_and_b32 v21, 1, v0\nv_lshl_add_u32 v21, v21, 3, s16\nv_mov_b32 v22, s18\nv_mov_b32 v23, 1")
                self.row_all("v_add_f32", [LS], par)
                self.xrow_all("v_add_f32", [LS], [18])
                a(f"s_mov_b64 exec, 3\nds_write_b64 v21, v[{MX}:{LS}]\ns_mov_b64 exec, 1\nds_add_u32 v22, v23 offset:8\ns_mov_b64 exec, -1")
                a("v_add_u32 v21, s16, v19")
                for e in range(4):
                    a(f"v_add_u32 v{28+e}, s{12+e}, v19")
                a("v_lshl_add_u32 v32, v1, 5, v32\nv_and_b32 v34, 1, v2\nv_lshl_add_u32 v32, v34, 4, v32")
                a("v_and_b32 v34, 3, v0\nv_lshl_add_u32 v33, v34, 4, v33")
            if t == self.opt.get("mgl", 8) and "lead" in self.opt:
                a("s_cmp_eq_u32 s21, 0\ns_cbranch_scc1 L_att_lead2")
                a(f"v_mov_b32 v72, {A_MG}\nv_mov_b32 v73, 1\ns_mov_b64 exec, 1\nds_add_u32 v72, v73\ns_mov_b64 exec, -1")
                a.label("L_att_lead2")
            if t == self.opt.get("mg", -1):
                a(f"v_mov_b32 v72, {A_MG}\nv_mov_b32 v73, 1\ns_mov_b64 exec, 1\nds_add_u32 v72, v73\ns_mov_b64 exec, -1")
            if t == self.opt.get("hold", 12):
                a(f"v_mov_b32 v72, {A_PUB}\nv_mov_b32 v73, 1\nds_max_u32 v72, v73")
            if t == TS:
                a(f"s_mov_b32 s{S_CNT}, 0")
                a.label("L_st_loop")
                a("ds_read_b32 v72, v22 offset:8")
                for e in range(4):
                    a(f"ds_read_b64 v[{74+2*e}:{75+2*e}], v{28+e}")
                a("ds_read_b32 v82, v21\ns_waitcnt lgkmcnt(0)\nv_cmp_ne_u32 vcc, s72, v72\ns_cbranch_vccnz L_st_retry")
                a.label("L_st_ok")

                def cold_st():
                    a.label("L_st_retry")
                    a(f"s_add_u32 s{S_CNT}, s{S_CNT}, 1\ns_cmp_lt_u32 s{S_CNT}, {SPIN_MAX*8}\ns_cbranch_scc1 L_st_loop\ns_branch L_st_ok")
                self.cold.append(cold_st)
                a("v_max3_f32 v84, v74, v76, v78\nv_max_f32 v84, v84, v80")
                for r in (74, 76, 78, 80, 82):
                    a(f"v_sub_f32 v{r}, v{r}, v84")
                for r in (74, 76, 78, 80, 82):
                    a(f"v_mul_f32 v{r}, {hx(f2u(LOG2E))}, v{r}")
                for r in (74, 76, 78, 80):
                    a(f"v_exp_f32 v{r}, v{r}")
                a(f"v_exp_f32 v{WS}, v82\nv_mul_f32 v85, v74, v75")
                for r in (76, 78, 80):
                    a(f"v_fmac_f32 v85, v{r}, v{r+1}")
                a("v_mov_b32 v86, v84\nv_mov_b32 v87, v85")
                self.tag4(84, vT)
                a("s_mov_b32 s78, 15\ns_mov_b32 s79, 15\ns_mov_b64 exec, s[78:79]")
                if self.fast:
                    a("s_cmp_eq_u32 s76, 2\ns_cbranch_scc0 L_st_slow")
                    a(f"buffer_store_dwordx4 v[84:87], v33, s[{SW}:{SW+3}], s74 offen offset:1024")
                    a.label("L_st_done")

                    def cold_st2():
                        a.label("L_st_slow")
                        a(f"buffer_store_dwordx4 v[84:87], v33, s[{SW}:{SW+3}], s74 offen offset:1024 sc1\ns_branch L_st_done")
                    self.cold.append(cold_st2)
                else:
                    a(f"buffer_store_dwordx4 v[84:87], v33, s[{SW}:{SW+3}], s74 offen offset:1024 sc1")
                a("s_mov_b64 exec, -1\ns_sub_u32 s72, s72, 1")
            if t + 1 < 24:
                self.diag(AS_[(t + 1) & 1], XS_[(t + 1) & 1], SEL)
            if t >= 16 or t % 4 == 0:
                t2 = t if t >= 16 else t + 3
                a(f"s_waitcnt vmcnt({after[t2] + (1 if t >= TS else 0)})")
            self.mfma(O, AS_[t & 1], VR + 4 * t, t == 0)
            if t + 2 < 24:
                self.dpp("v_mov_b32", XS_[t & 1], PP + ((t + 2) >> 3), None, f"row_newbcast:{2 * ((t + 2) & 7)}")
        self.stamp(4)
        for r in range(4):
            a(f"v_mul_f32 v{O+r}, v{WS}, v{O+r}")
        a(f"ds_write_b128 v20, v[{O}:{O+3}]")
        a("s_mov_b64 exec, 1\nds_add_rtn_u32 v23, v22, v23\ns_mov_b64 exec, -1")
        for e in range(4):
            a(f"ds_read_b128 v[{72+4*e}:{75+4*e}], v{24+e}")
        a("s_waitcnt lgkmcnt(4)" if not self.stamps else "s_waitcnt lgkmcnt(0)")
        a("v_readfirstlane_b32 s38, v23")
        a("s_cmp_eq_u32 s38, s72\ns_cbranch_scc0 L_att_done")
        a("s_waitcnt lgkmcnt(2)" if not self.stamps else "s_nop 0")
        a("v_pk_add_f32 v[72:73], v[72:73], v[76:77]\nv_pk_add_f32 v[74:75], v[74:75], v[78:79]")
        a("s_waitcnt lgkmcnt(0)")
        a("v_pk_add_f32 v[80:81], v[80:81], v[84:85]\nv_pk_add_f32 v[82:83], v[82:83], v[86:87]")
        a("v_pk_add_f32 v[72:73], v[72:73], v[80:81]\nv_pk_add_f32 v[74:75], v[74:75], v[82:83]")
        self.tag4(72, vT)
        if self.fast:
            a("s_cmp_eq_u32 s76, 2\ns_cbranch_scc0 L_att_slow")
            a(f"buffer_store_dwordx4 v[72:75], v32, s[{SW}:{SW+3}], s74 offen")

            def cold_o():
                a.label("L_att_slow")
                a(f"buffer_store_dwordx4 v[72:75], v32, s[{SW}:{SW+3}], s74 offen sc1\ns_branch L_att_pub")
            self.cold.append(cold_o)
        else:
            a(f"buffer_store_dwordx4 v[72:75], v32, s[{SW}:{SW+3}], s74 offen sc1")
        a.label("L_att_pub")
        a(f"v_mov_b32 v76, {A_PUB}\nds_write_b32 v76, v76")
        a.label("L_att_done")
        self.stamp(5)
        a("s_waitcnt lgkmcnt(0)")
        a("s_sub_u32 s38, s45, 2\ns_cmp_lt_u32 s38, 18\ns_cbranch_scc0 L_att_exit")
        a(f"s_lshl_b32 s77, s{S_WAVE}, 8")
        self.const_addr(77, 54, 55)
        self.const_loads(40, 54, 55)
        a("s_waitcnt vmcnt(0)\ns_branch L_s4")
        a.label("L_att_exit")
        self.dump_stamps()
        a("s_endpgm")

    M_W1, M_W2, M_W2T, M_XR, M_SEL, M_MSK, M_DA, M_DB, M_A0, M_A1 = 72, 108, 140, 208, 228, 232, 236, 240, 244, 248
    M_VX, M_VP, M_VS, M_B1 = 252, 253, 254, 255

    def mlpw(self):
        a = self.a
        vT = 7
        DM = self.opt.get("dm", 30)
        a.label("L_mlpw")
        a(f"s_sub_u32 s45, s{S_U}, 9\ns_sub_u32 s46, s{S_WAVE}, 4")
        a("s_mov_b32 s44, 0\ns_cmp_lt_u32 s46, 2\ns_cbranch_scc1 L_mlpw_go\ns_sub_u32 s38, s45, 2\ns_cmp_lt_u32 s38, 18\ns_cbranch_scc0 L_end")
        if self.opt.get("c3", 0):
            a(f"s_mul_i32 s39, s{S_X}, 18\ns_add_u32 s38, s38, s39\ns_bfe_u32 s38, s38, 0x30001\ns_cmp_eq_u32 s38, 3\ns_cbranch_scc1 L_mlpw_go")
        a("s_cmp_eq_u32 s46, 2\ns_cbranch_scc1 L_tile_a")
        a.label("L_mlpw_go")
        a("s_cmp_eq_u32 s46, 0\ns_cbranch_scc0 L_mlpw_noinit")
        a("v_mov_b32 v3, 0\nv_mov_b32 v8, 0\nv_mov_b32 v9, 0\nv_mov_b32 v10, 0\nv_mov_b32 v11, 0\nv_lshlrev_b32 v6, 4, v0")
        a("v_mov_b32 v12, 0xff800000\nv_mov_b32 v13, 0\nv_mov_b32 v14, 0xff800000\nv_mov_b32 v15, 0")
        a(f"ds_write_b128 v3, v[8:11] offset:{A_CNT}\nds_write_b128 v3, v[12:15] offset:{A_NEG}\nds_write_b128 v6, v[8:11] offset:{A_ZERO}")
        a(f"ds_write_b128 v3, v[8:11] offset:{A_FLAG}\nds_write_b128 v3, v[8:11] offset:{A_PUB}")
        a.label("L_mlpw_noinit")
        a(f"s_mul_i32 s38, s46, 384\ns_add_u32 s38, s38, {A_XS}")
        a(f"s_lshl_b32 s38, s46, 8\ns_add_u32 s38, s38, {A_F1P}")
        a(f"v_lshlrev_b32 v4, 5, v1\nv_lshl_add_u32 v226, v2, 4, v4\nv_add_u32 v{self.M_VP}, s38, v226")
        a("s_and_b32 s77, s45, 1")
        a("v_and_b32 v4, 31, v0\nv_lshlrev_b32 v4, 2, v4\nv_lshrrev_b32 v5, 5, v0\nv_lshl_add_u32 v227, v5, 8, v4\nv_lshl_add_u32 v4, v5, 9, v4")
        a(f"s_lshl_b32 s38, s77, 7\ns_add_u32 s38, s38, {A_F1P}\nv_add_u32 v{self.M_VS}, s38, v4")
        a("v_lshrrev_b32 v4, 3, v1\nv_lshl_add_u32 v4, v2, 1, v4\nv_and_b32 v5, 7, v1\nv_lshlrev_b32 v5, 4, v5")
        a("s_cmp_eq_u32 s44, 0\ns_cbranch_scc0 L_mlpw_t")
        a("s_waitcnt lgkmcnt(0)\ns_barrier")
        self.ws_setup()
        self.tag_setup(vT)
        a.label("L_mlpw_t")
        a("s_waitcnt lgkmcnt(0)")
        a(f"v_mov_b32 v{vT}, s{S_T}")
        self.sel_setup(self.M_SEL, 8, 9, 13)
        a(f"s_mul_i32 s47, s{S_X}, 18\ns_add_u32 s47, s47, s45\ns_sub_u32 s47, s47, 2")
        self.srd(SA, P_W1, 576 * 9216)
        self.srd(SB, P_W2, 4608 * 1152)
        self.srd(12, P_B1, 9216)
        a(f"v_mul_u32_u24 v10, 9216, v4\nv_lshl_add_u32 v6, v10, 3, v5\nv_add_u32 v{self.M_VX}, v10, v5\nv_lshlrev_b32 v3, 2, v4")
        a(f"s_lshl_b32 s70, s77, 2\ns_add_u32 s70, s70, s46\ns_mul_i32 s18, s70, 288\ns_mul_i32 s70, s70, {72*9216}")
        a("s_lshr_b32 s39, s47, 1\ns_lshl_b32 s39, s39, 7\ns_add_u32 s70, s70, s39\ns_lshl_b32 s39, s47, 6")
        a(f"s_lshl_b32 s19, s47, 9\ns_lshl_b32 s38, s46, 7\ns_add_u32 s19, s19, s38\ns_add_u32 s19, s19, {EX-128}\ns_lshl_b32 s38, s77, 7\ns_add_u32 s19, s19, s38")
        a(f"s_xor_b32 s16, s47, 1\ns_lshl_b32 s16, s16, 9\ns_add_u32 s16, s16, {EX}")
        a("s_mov_b32 s74, 0x000f000f\ns_lshl_b32 s38, s77, 2\ns_sub_u32 s38, 4, s38\ns_lshl_b32 s74, s74, s38\ns_mov_b32 s21, s74")
        a("v_and_b32 v8, 1, v0\nv_lshlrev_b32 v8, 4, v8\nv_mov_b32 v9, 0xffff\nv_lshlrev_b32 v8, v8, v9\nv_bfe_u32 v9, v0, 1, 2")
        for d in range(4):
            a(f"v_cmp_eq_u32 vcc, {d}, v9\nv_cndmask_b32 v{self.M_MSK+d}, 0, v8, vcc")
        a(f"v_and_b32 v8, 31, v0\nv_lshl_add_u32 v{self.M_B1}, v8, 1, s39")
        self.srd(SC, P_X, 1152)
        a("v_and_b32 v8, 1, v2\nv_lshlrev_b32 v8, 4, v8\nv_lshrrev_b32 v9, 1, v2\nv_lshl_add_u32 v8, v9, 3, v8")
        a("v_mul_u32_u24 v8, 1152, v8\nv_lshl_add_u32 v8, v1, 4, v8")
        a("v_cmp_gt_u32 vcc, 8, v1\nv_mov_b32 v9, 0x7fffffff\nv_cndmask_b32 v9, v9, v8, vcc")
        a(f"s_mul_i32 s71, s47, {32*1152}\ns_lshl_b32 s72, s46, 8\ns_add_u32 s72, s72, s71\ns_add_u32 s73, s72, 4608")
        a(f"s_lshl_b32 s77, s{S_WAVE}, 8\ns_mov_b32 s76, 2048")
        self.const_addr(77, 54, 55)
        self.const_addr(76, 70, 71)
        a("s_cmp_lt_u32 s46, 2\ns_cbranch_scc0 L_mlpw_gate")
        a("s_lshl_b32 s38, s45, 1\ns_add_u32 s38, s38, s46\ns_cmp_ge_u32 s38, 23\ns_cselect_b32 s38, 1, 0")
        a(f"s_lshl_b32 s39, s{S_X}, 1\ns_add_u32 s38, s38, s39\ns_lshl_b32 s74, s38, 10\ns_add_u32 s74, s74, {QB}")
        a("v_lshlrev_b32 v10, 4, v0")
        a(f"s_lshl_b32 s38, s46, 9\ns_add_u32 s38, s38, {A_QL}\nv_lshl_add_u32 v12, v0, 3, s38")
        a(f"s_lshl_b32 s38, s46, 2\ns_add_u32 s38, s38, {A_FLAG}\nv_mov_b32 v13, s38")
        a("s_getreg_b32 s69, hwreg(HW_REG_XCC_ID, 0, 4)\ns_lshl_b32 s69, s69, 8\ns_or_b32 s69, s69, 0x1000")
        self.lds_wait(A_GO, 2, 11, 14, 4, "L_go")
        a("s_setprio 3")
        NP = self.opt.get("np", 3)

        def qload(k):
            a(f"buffer_load_dwordx4 v[{16+4*k}:{19+4*k}], v10, s[{SW}:{SW+3}], s74 offen sc1")
        self.stamp(7)
        for k in range(NP):
            qload(k)
            if k + 1 < NP:
                a(f"s_sleep {self.opt.get('qgap', 8)}")
        a(f"s_mov_b32 s{S_CNT}, 0")
        a.label("L_qp_loop")
        for k in range(NP):
            self.clean([16 + 4 * k], [], None, 14, waits=[NP - 1])
            a(f"s_cbranch_vccz L_qp_ok{k}")
            qload(k)
        a(f"s_add_u32 s{S_CNT}, s{S_CNT}, 1\ns_cmp_lt_u32 s{S_CNT}, {SPIN_MAX}\ns_cbranch_scc1 L_qp_loop")
        a("s_waitcnt vmcnt(0)")
        for k in range(NP - 1, -1, -1):
            a.label(f"L_qp_ok{k}")
            a(f"s_mov_b32 s38, 0x07060302\nv_perm_b32 v14, v{17+4*k}, v{16+4*k}, s38\nv_perm_b32 v15, v{19+4*k}, v{18+4*k}, s38")
            a(f"v_and_b32 v11, 0x1f00, v{16+4*k}")
            if k:
                a("s_branch L_qp_got")
        a.label("L_qp_got")
        a("ds_write_b64 v12, v[14:15]\nv_cmp_ne_u32 vcc, s69, v11\ns_cmp_eq_u64 vcc, 0\ns_cselect_b32 s69, 2, 1\nv_mov_b32 v11, s69")
        a("ds_write_b32 v13, v11\ns_waitcnt lgkmcnt(0)")
        self.stamp(8)
        a("s_setprio 0\ns_sub_u32 s38, s45, 2\ns_cmp_lt_u32 s38, 18\ns_cbranch_scc0 L_att_exit")
        a.label("L_mlpw_gate")
        self.lds_wait(A_MG, self.opt.get("mgn", 4), 11, 14, 2, "L_mg")
        self.stamp(1)
        D1 = self.opt.get("dm1", 30)
        a("s_cmp_eq_u32 s46, 0\ns_cbranch_scc0 L_mlp_c1")
        self.const_loads(56, 70, 71)
        a.label("L_mlp_c1")
        self.const_loads(40, 54, 55)
        a(f"buffer_load_ushort v{self.M_B1}, v{self.M_B1}, s[12:15], 0 offen nt")
        a(f"v_mov_b32 v11, {A_PUB}")
        seq = []
        for s in range(9):
            r = self.M_W1 + 4 * s
            seq.append(f"buffer_load_dwordx4 v[{r}:{r+3}], v{6 if s < 8 else self.M_VX}, s[{SA}:{SA+3}], s70 offen nt"
                       + (f"\ns_add_u32 s70, s70, {9216 if s < 7 else 57*9216}" if s < 8 else ""))
        w2 = [f"buffer_load_dwordx4 v[{self.M_W2+4*s}:{self.M_W2+4*s+3}], v8, s[{SB}:{SB+3}], {'s72' if s < 4 else 's73'} offen offset:{(s & 3) * 1152} nt" for s in range(8)]
        if self.opt.get("il", 1):
            seq = [x for pair in zip(seq, w2 + [None]) for x in pair if x]
        else:
            seq += w2
        for k, t in enumerate(seq):
            a(f"s_waitcnt vmcnt({D1-1})")
            a(t)
            if k + 1 < len(seq):
                a(f"ds_read_b32 v14, v11\ns_waitcnt lgkmcnt(0)\nv_cmp_ne_u32 vcc, 0, v14\ns_cbranch_vccnz L_mh_{k+1}")
        a(f"s_branch L_mb_{len(seq)}")

        def cold_hold():
            for k in range(1, len(seq)):
                a.label(f"L_mh_{k}")
                a(f"s_mov_b32 s{S_CNT}, 0")
                a.label(f"L_mh_{k}_l")
                a(f"v_cmp_lt_u32 vcc, 1, v14\ns_cbranch_vccnz L_mb_{k}\nds_read_b32 v14, v11\ns_add_u32 s{S_CNT}, s{S_CNT}, 1")
                a(f"s_cmp_lt_u32 s{S_CNT}, {SPIN_MAX*8}\ns_waitcnt lgkmcnt(0)\ns_cbranch_scc1 L_mh_{k}_l\ns_branch L_mb_{k}")
        self.cold.append(cold_hold)
        for k, t in enumerate(seq):
            if k:
                a.label(f"L_mb_{k}")
                if DM < 17:
                    a(f"s_waitcnt vmcnt({DM-1})")
                a(t)
        a.label(f"L_mb_{len(seq)}")
        a("s_cmp_eq_u32 s46, 3\ns_cbranch_scc0 L_mlp_issued")
        a("s_add_u32 s72, s71, 1024\ns_add_u32 s73, s72, 4608")
        for s in range(8):
            r = self.M_W2T + 4 * s
            if DM < 25:
                a(f"s_waitcnt vmcnt({DM-1})")
            a(f"buffer_load_dwordx4 v[{r}:{r+3}], v9, s[{SB}:{SB+3}], {'s72' if s < 4 else 's73'} offen offset:{(s & 3) * 1152} nt")
        a.label("L_mlp_issued")
        a(f"buffer_load_dword v30, v227, s[{SW}:{SW+3}], s16 offen sc1\nbuffer_load_dword v31, v227, s[{SW}:{SW+3}], s16 offen offset:128 sc1")
        a("s_waitcnt vmcnt(19)")

    def stat_reduce(self, v, t, vaddrA, vaddrB):
        a = self.a
        for p in range(3):
            a(f"v_permlane32_swap_b32 v{v+2*p}, v{v+2*p+1}")
        for p in range(3):
            a(f"v_add_f32 v{v+2*p}, v{v+2*p}, v{v+2*p+1}")
        a(f"v_mov_b32 v{t}, v{v+4}\nv_permlane16_swap_b32 v{v}, v{v+2}\nv_permlane16_swap_b32 v{t}, v{v+4}")
        a(f"v_add_f32 v{v}, v{v}, v{v+2}\nv_add_f32 v{v+4}, v{v+4}, v{t}")
        self.row_all("v_add_f32", [v, v + 4])
        a("s_mov_b64 exec, s[78:79]")
        a(f"ds_write_b32 v{vaddrA}, v{v}\nds_write_b32 v{vaddrB}, v{v+4}")
        a("s_mov_b64 exec, -1")

    A2 = (25, 49)

    def s4_block(self, boff, sfx, last):
        a = self.a
        o = 0 if sfx == 0 else 24
        R, va = (40, 54) if sfx == 0 else (56, 70)
        XV, GA, AV, BV = 8 + o, 9 + o, 10 + o, 11 + o
        lp, rt = self.lab("cst"), self.lab("cstr")
        a(f"s_mov_b32 s{S_CNT}, 0")
        a.label(lp)
        self.clean([R, R + 4, R + 8], [], None, 4)
        a(f"s_cbranch_vccnz {rt}")
        a.label(lp + "_ok")

        def cold():
            a.label(rt)
            self.const_loads(R, va, None)
            a(f"s_add_u32 s{S_CNT}, s{S_CNT}, 1\ns_cmp_lt_u32 s{S_CNT}, {SPIN_MAX}\ns_waitcnt vmcnt(0)\ns_cbranch_scc1 {lp}\ns_branch {lp}_ok")
        self.cold.append(cold)
        for k in range(3):
            self.rscatter(R + 4 * k)
        self.rnd2(R, R + 4, 4)
        self.rnd1(R + 8)
        a(f"v_lshlrev_b32 v{XV}, 16, v{R+12}\nv_mov_b32 v{GA}, v{R}\nv_mov_b32 v{BV}, v{R+4}\nv_add_f32 v{AV}, 1.0, v{R+8}")
        self.rnd1(AV)
        a(f"v_lshlrev_b32 v{12+o}, 4, v1\nv_lshl_add_u32 v{12+o}, v2, 2, v{12+o}\nv_add_u32 v{12+o}, s{boff}, v{12+o}")
        a(f"ds_write_b32 v{12+o}, v{AV} offset:{A_AA}\nds_write_b32 v{12+o}, v{BV} offset:{A_BB}")
        if not sfx:
            a(f"s_lshr_b32 s38, s{boff}, 2\ns_add_u32 s38, s38, {A_STAT}")
            a("v_and_b32 v14, 1, v2\nv_lshlrev_b32 v14, 3, v14\nv_lshrrev_b32 v15, 1, v2\nv_lshlrev_b32 v15, 2, v15")
            a("v_add3_u32 v14, v14, v15, s38\nv_add3_u32 v15, v15, 16, s38\nv_add_u32 v16, 32, v14\nv_add_u32 v17, 32, v15")
        E = 18 + o
        a(f"v_add_f32 v{BV}, v{BV}, v{BV}")
        a(f"v_mov_b32 v{E}, v{AV}\nv_mul_f32 v{E+1}, v{AV}, v{AV}\nv_mul_f32 v{E+2}, v{AV}, v{BV}")
        a(f"v_mul_f32 v{E+3}, 0.5, v{BV}\nv_mul_f32 v{E+4}, v{E+3}, v{E+3}\nv_mov_b32 v{E+5}, 0")
        if last:
            if sfx:
                for k in range(5):
                    a(f"v_add_f32 v{18+k}, v{18+k}, v{E+k}")
            self.stat_reduce(18, 24, 16, 17)
        a(f"v_add_f32 v{self.A2[sfx]}, v{AV}, v{AV}")
        a(f"v_mul_u32_u24 v{13+o}, 2304, v2\nv_lshl_add_u32 v{13+o}, v1, 4, v{13+o}\nv_add_u32 v{13+o}, s{boff}, v{13+o}")

    def s4_finish(self, blocks):
        a = self.a
        for G0, o in blocks:
            a(f"v_pk_add_f32 v[{G0}:{G0+1}], v[{G0}:{G0+1}], v[{G0+4}:{G0+5}]\nv_pk_add_f32 v[{G0+2}:{G0+3}], v[{G0+2}:{G0+3}], v[{G0+6}:{G0+7}]")
        if len(blocks) > 1:
            self.rscatter2(blocks[0][0], blocks[1][0])
        else:
            self.rscatter(blocks[0][0])
        for G0, o in blocks:
            XV, GA, AV, BV = 8 + o, 9 + o, 10 + o, 11 + o
            E = 18 + o
            a(f"v_fma_f32 v{E}, v{GA}, v{G0}, v{XV}")
            a(f"v_mul_f32 v{E+2}, v{AV}, v{E}\nv_mul_f32 v{E+1}, v{E}, v{E}")
            a(f"ds_write_b32 v{12+o}, v{E+2} offset:{A_U}")
            a(f"v_mul_f32 v{E+3}, v{self.A2[o > 0]}, v{E+2}\nv_mul_f32 v{E+4}, v{E+2}, v{E+2}\nv_mul_f32 v{E+5}, v{BV}, v{E+2}")
        if len(blocks) > 1:
            for k in range(0, 6, 2):
                a(f"v_pk_add_f32 v[{18+k}:{19+k}], v[{18+k}:{19+k}], v[{42+k}:{43+k}]")
        self.stat_reduce(18, 24, 14, 15)

    def poll(self, loads, grans, words, vtb, acc, sleep=0, waits=None):
        a = self.a
        lp = self.lab("poll")
        a(f"s_mov_b32 s{S_CNT}, 0")
        a.label(lp)
        for t in loads:
            a(t)
        n = len(loads)
        self.clean(grans, words, vtb, acc, waits or [n - 1 - k for k in range(n)])
        a(f"s_cbranch_vccnz {lp}_r")
        a.label(lp + "_ok")

        def cold():
            a.label(lp + "_r")
            if sleep:
                a(f"s_sleep {sleep}")
            a(f"s_add_u32 s{S_CNT}, s{S_CNT}, 1\ns_cmp_lt_u32 s{S_CNT}, {SPIN_MAX}\ns_cbranch_scc1 {lp}\ns_branch {lp}_ok")
        self.cold.append(cold)

    def poll2(self, loads, grans, off, acc, use, gap):
        a = self.a
        lp = self.lab("pp")
        n = len(loads(0))
        waits = [2 * n - 1 - k for k in range(n)]
        for t in loads(0):
            a(t)
        if gap:
            a(f"s_sleep {gap}")
        for t in loads(off):
            a(t)
        a(f"s_mov_b32 s{S_CNT}, 0")
        a.label(lp)
        self.clean(grans, [], None, acc, waits)
        a(f"s_cbranch_vccnz {lp}_b")
        use(0)
        a.label(lp + "_ok")

        def cold():
            a.label(lp + "_b")
            for t in loads(0):
                a(t)
            self.clean([g + off for g in grans], [], None, acc, waits)
            a(f"s_cbranch_vccnz {lp}_r")
            use(off)
            a(f"s_nop 1\ns_branch {lp}_ok")
            a.label(lp + "_r")
            for t in loads(off):
                a(t)
            a(f"s_add_u32 s{S_CNT}, s{S_CNT}, 1\ns_cmp_lt_u32 s{S_CNT}, {SPIN_MAX}\ns_cbranch_scc1 {lp}\ns_branch {lp}_ok")
        self.cold.append(cold)

    def s4_gate(self, sfx):
        a = self.a
        n = self.opt.get("wd", 4)
        if not n:
            return
        a(f"s_cmp_ge_u32 s{S_WAVE}, 4\ns_cbranch_scc0 L_wd{sfx}0\ns_waitcnt vmcnt({self.opt.get('wdv', 30)})")
        a(f"v_mov_b32 v4, {A_WD}\nv_mov_b32 v5, 1\ns_mov_b64 exec, 1\nds_add_u32 v4, v5\ns_mov_b64 exec, -1")
        a.label(f"L_wd{sfx}0")
        self.lds_wait(A_WD, n, 4, 5, 1, f"L_wd{sfx}")

    def s4_and_mlp(self):
        a = self.a
        vT = 7
        a.label("L_s4")
        a("s_setprio 3")
        self.stamp(6)
        a("s_mov_b32 s78, 0x00010001\ns_mov_b32 s79, 0x00010001")
        if self.opt.get("apr", 1):
            a(f"s_mul_i32 s74, s{S_X}, 18432\ns_add_u32 s74, s74, {APR}\ns_add_u32 s75, s74, {4*2304}")
        else:
            a(f"s_mov_b32 s74, {AP}\ns_mov_b32 s75, {AP + 4*2304}")
        a(f"v_lshlrev_b32 v26, 2, v0\nv_add_u32 v27, {A_STAT}, v26\nv_add_u32 v26, s18, v26\nv_add_u32 v3, s18, v3")
        a(f"v_cmp_eq_u32 vcc, 1, v1\nv_cmp_eq_u32 s[38:39], 12, v1\nv_mov_b32 v29, {hx(f2u(1e-5))}\ns_or_b64 vcc, vcc, s[38:39]\ns_nop 1\nv_cndmask_b32 v28, 0, v29, vcc\nv_mov_b32 v29, 0")
        a(f"s_cmp_eq_u32 s{S_WAVE}, 4\ns_cbranch_scc0 L_s4_one")
        self.s4_block(77, 0, False)
        self.s4_block(76, 1, True)
        self.s4_gate("b")
        self.poll([f"buffer_load_dwordx4 v[56:59], v13, s[{SW}:{SW+3}], s74 offen sc1",
                   f"buffer_load_dwordx4 v[60:63], v13, s[{SW}:{SW+3}], s75 offen sc1",
                   f"buffer_load_dwordx4 v[64:67], v37, s[{SW}:{SW+3}], s74 offen sc1",
                   f"buffer_load_dwordx4 v[68:71], v37, s[{SW}:{SW+3}], s75 offen sc1"], [56, 60, 64, 68], [], None, 4, sleep=self.opt.get("apsl", 0))
        self.stamp(7)
        self.s4_finish([(56, 0), (64, 24)])
        a.label("L_s4_bar")
        a("s_waitcnt lgkmcnt(0)\ns_barrier")
        a(f"s_cmp_ge_u32 s{S_WAVE}, 4\ns_cbranch_scc0 L_att_exit")

        def cold_one():
            a.label("L_s4_one")
            self.s4_block(77, 0, True)
            self.s4_gate("a")
            self.poll([f"buffer_load_dwordx4 v[56:59], v13, s[{SW}:{SW+3}], s74 offen sc1",
                       f"buffer_load_dwordx4 v[60:63], v13, s[{SW}:{SW+3}], s75 offen sc1"], [56, 60], [], None, 4, sleep=self.opt.get("apsl", 0))
            self.stamp(7)
            self.s4_finish([(56, 0)])
            a("s_branch L_s4_bar")
        self.cold.insert(0, cold_one)
        self.stamp(2)
        a("ds_read2st64_b32 v[10:11], v27 offset0:0 offset1:1")
        for k, base in enumerate((A_U, A_AA, A_BB)):
            assert base % 256 == 128 or base % 256 == 0
            a(f"ds_read_b32 v{16+4*k}, v26 offset:{base}\nds_read_b32 v{17+4*k}, v3 offset:{base+256}")
        a(f"v_mov_b32 v12, {hx(f2u(1.0/576))}")
        a("s_waitcnt lgkmcnt(6)" if not self.stamps else "s_waitcnt lgkmcnt(0)")
        a("v_add_f32 v10, v10, v11")
        self.xrow_all("v_add_f32", [10], [11])
        a("v_fma_f32 v10, v10, v12, v28")
        nm, e2, ax, t3, a2, b2, m2, h2 = range(30, 38)

        def bc(op, d, k, s1=None):
            self.dpp(op, d, 10, s1, f"row_newbcast:{k}")
        bc("v_subrev_f32", nm, 0, 29)
        for d, k in ((e2, 1), (ax, 2), (t3, 3), (b2, 5), (a2, 4), (m2, 11), (h2, 12)):
            bc("v_mov_b32", d, k)
        bc("v_fmac_f32", e2, 0, nm)
        bc("v_fmac_f32", t3, 9, nm)
        a(f"v_rsq_f32 v{e2}, v{e2}")
        bc("v_fmac_f32", ax, 8, nm)
        bc("v_fmac_f32", b2, 10, nm)
        a(f"v_fmac_f32 v{a2}, v{t3}, v{nm}\nv_fmac_f32 v{m2}, v{e2}, v{ax}\nv_fmac_f32 v{b2}, v{e2}, v{a2}\nv_fmac_f32 v{h2}, v{e2}, v{b2}")
        a(f"v_fma_f32 v{h2}, -v{m2}, v{m2}, v{h2}\nv_mul_f32 v{nm}, v{nm}, v{e2}\nv_rsq_f32 v{h2}, v{h2}")
        a("s_waitcnt lgkmcnt(0)")
        for k in range(2):
            a(f"v_sub_f32 v{24+k}, v{24+k}, v{m2}")
        for k in range(2):
            a(f"v_fmac_f32 v{24+k}, v{nm}, v{20+k}")
        for k in range(2):
            a(f"v_fmac_f32 v{24+k}, v{e2}, v{16+k}")
        for k in range(2):
            a(f"v_mul_f32 v{24+k}, v{h2}, v{24+k}")
        self.dpp("v_mov_b32", 22, 24, None, "row_ror:8")
        self.dpp("v_mov_b32", 23, 25, None, "row_ror:8")
        a("v_cvt_pk_bf16_f32 v24, v24, v22\nv_cvt_pk_bf16_f32 v25, v25, v23")
        self.stamp(3)
        Da, Db = self.M_DA, self.M_DB
        AS_ = (self.M_A0, self.M_A1)
        XS_ = (22, 23)

        def xb(s):
            self.dpp("v_mov_b32", XS_[s & 1], 24 + (s >> 3), None, f"row_newbcast:{s & 7}")
        xb(0)
        xb(1)
        self.diag(AS_[0], XS_[0], self.M_SEL)
        for s in range(9):
            if s + 1 < 9:
                self.diag(AS_[(s + 1) & 1], XS_[(s + 1) & 1], self.M_SEL)
            self.mfma(Db, AS_[s & 1], self.M_W1 + 4 * s, s == 0)
            if s + 2 < 9:
                xb(s + 2)
        a(f"v_lshlrev_b32 v{self.M_B1}, 16, v{self.M_B1}")
        a("v_lshlrev_b32 v8, 5, v1\nv_lshl_add_u32 v8, v2, 4, v8\nv_and_b32 v10, 3, v0")
        self.tagbyte(9, 10, vT)
        a(f"s_mul_i32 s38, s47, 2304\ns_add_u32 s38, s38, {FP}")
        self.fold2(Db, self.M_A0)
        for k in range(4):
            a(f"v_perm_b32 v{40+k}, v{Db+k}, v{vT}, s{4+k}")
        a("s_mov_b32 exec_hi, 0\ns_mov_b32 exec_lo, s21")
        a(f"buffer_store_dwordx4 v[40:43], v226, s[{SW}:{SW+3}], s19 offen")
        a("s_mov_b32 exec_lo, 0x00ff00ff")
        a(f"ds_write_b128 v{self.M_VP}, v[{Db}:{Db+3}]")
        exl = f"buffer_load_dword v18, v227, s[{SW}:{SW+3}], s16 offen sc1\nbuffer_load_dword v19, v227, s[{SW}:{SW+3}], s16 offen offset:128 sc1"
        a("s_mov_b64 exec, -1")
        if self.opt.get("exe", 1):
            a(exl)
        a(f"s_lshl_b32 s39, s46, 9\ns_add_u32 s39, s39, s38\ns_mov_b32 s{S_CNT}, 0\ns_waitcnt lgkmcnt(0)\ns_barrier")
        self.stamp(4)
        a(f"ds_read2st64_b32 v[16:17], v{self.M_VS} offset0:0 offset1:1")
        a(f"v_mov_b32 v12, {hx(f2u(-2.0 * 0.7978845608028654 * LOG2E))}")
        if not self.opt.get("exe", 1):
            a(exl)
        a.label("L_ex")
        self.clean([], [18, 19], 9, 10, waits=[1, 0])
        a("s_cbranch_vccnz L_ex_r")
        a.label("L_ex_ok")

        def resend(late=False):
            if late and self.opt.get("exs", 0):
                a(f"s_waitcnt vmcnt(0)\ns_sleep {self.opt.get('exs', 0)}")
            a("s_mov_b32 exec_hi, 0\ns_mov_b32 exec_lo, s21")
            a(f"buffer_store_dwordx4 v[40:43], v226, s[{SW}:{SW+3}], s19 offen sc1")

        def cold_ex():
            a.label("L_ex_r")
            a(f"s_cmp_eq_u32 s{S_CNT}, 6\ns_cbranch_scc0 L_ex_r2")
            resend()
            a("s_mov_b64 exec, -1")
            a.label("L_ex_r2")
            a(exl)
            a(f"s_add_u32 s{S_CNT}, s{S_CNT}, 1\ns_cmp_lt_u32 s{S_CNT}, {SPIN_MAX}\ns_cbranch_scc1 L_ex\ns_branch L_ex_ok")
        self.cold.append(cold_ex)
        K1 = -2.0 * 0.7978845608028654 * LOG2E
        a("s_waitcnt lgkmcnt(0)\nv_pk_add_f32 v[16:17], v[16:17], v[18:19]")
        a("v_add_f32 v16, v16, v17\nv_mov_b32 v10, v16\nv_permlane32_swap_b32 v10, v16")
        a(f"v_add_f32 v16, v16, v10\nv_add_f32 v16, v16, v{self.M_B1}")
        a(f"v_mul_f32 v10, v16, v16\nv_fmac_f32 v12, {hx(f2u(K1 * 0.044715))}, v10\nv_mul_f32 v12, v12, v16")
        a("v_exp_f32 v12, v12\nv_add_f32 v12, 1.0, v12\nv_rcp_f32 v12, v12\nv_mul_f32 v16, v16, v12")
        a("v_cvt_pk_bf16_f32 v16, v16, v16")
        self.dpp("v_mov_b32", 16, 16, None, "row_ror:8", rm=0xc)

        def prep(s):
            for d in range(4):
                self.dpp("v_and_b32", AS_[s & 1] + d, 16, self.M_MSK + d, f"row_newbcast:{s}")
        a("s_cmp_eq_u32 s46, 3\ns_cbranch_scc1 L_f2_two")
        prep(0)
        for s in range(8):
            if s + 1 < 8:
                prep(s + 1)
            self.mfma(Da, AS_[s & 1], self.M_W2 + 4 * s, s == 0)
        self.tag4(Da, vT)
        a("s_mov_b32 exec_hi, 0")
        a(f"buffer_store_dwordx4 v[{Da}:{Da+3}], v8, s[{SW}:{SW+3}], s39 offen sc1")
        self.stamp(5)
        resend(True)
        self.dump_stamps()
        a("s_endpgm")
        a.label("L_f2_two")
        prep(0)
        for s in range(8):
            if s + 1 < 8:
                prep(s + 1)
            self.mfma(Da, AS_[s & 1], self.M_W2 + 4 * s, s == 0)
            self.mfma(Db, AS_[s & 1], self.M_W2T + 4 * s, s == 0)
        self.tag4(Da, vT)
        self.tag4(Db, vT)
        a("s_mov_b32 exec_hi, 0")
        a(f"buffer_store_dwordx4 v[{Da}:{Da+3}], v8, s[{SW}:{SW+3}], s39 offen sc1")
        a("s_mov_b32 exec_lo, 0x00ff00ff")
        a(f"buffer_store_dwordx4 v[{Db}:{Db+3}], v8, s[{SW}:{SW+3}], s38 offen offset:2048 sc1")
        self.stamp(5)
        resend(True)
        self.dump_stamps()
        a("s_endpgm")

    def lds_wait(self, addr, lvl, va, vd, sleep, name):
        a = self.a
        a(f"v_mov_b32 v{va}, {addr}\ns_mov_b32 s{S_CNT}, 0")
        a.label(name)
        a(f"ds_read_b32 v{vd}, v{va}\ns_waitcnt lgkmcnt(0)\nv_cmp_le_u32 vcc, {lvl}, v{vd}\ns_cbranch_vccnz {name}_ok")
        if sleep:
            a(f"s_sleep {sleep}")
        a(f"s_add_u32 s{S_CNT}, s{S_CNT}, 1\ns_cmp_lt_u32 s{S_CNT}, {SPIN_MAX*8}\ns_cbranch_scc1 {name}")
        a.label(name + "_ok")

    def wcu(self):
        a = self.a
        MB, WO, XA, XB, XO, XR, A0, A1, D, SEL, vT, TB, HG, OG, ST = 16, 88, 152, 156, 157, 160, 180, 184, 188, 192, 196, 197, 200, 220, 244
        VWO, VRW, VRR, VCOL, VQ = 248, 249, 250, 251, 252
        AS_ = (A0, A1)

        def tile_loads(dep=99):
            a("s_mul_i32 s38, s46, 288\nv_lshl_add_u32 v6, v0, 1, s38")
            for k in range(3):
                a(f"buffer_load_ushort v{10+k}, v6, s[{SC}:{SC+3}], 0 offen offset:{128*k}")
            a("v_mul_u32_u24 v6, 6912, v3\nv_add_u32 v6, v6, v4")
            a(f"s_mul_i32 s38, s46, {144*6912}\ns_lshl_b32 s39, s45, 7\ns_add_u32 s38, s38, s39")
            for s in range(18):
                r = MB + 4 * s
                if s >= dep:
                    a(f"s_waitcnt vmcnt({dep-1})")
                a(f"buffer_load_dwordx4 v[{r}:{r+3}], v6, s[{SA}:{SA+3}], s38 offen nt")
                if s < 17:
                    a(f"s_add_u32 s38, s38, {8*6912}")

        def gemv18(younger):
            self.diag(A0, XR, SEL)
            for s in range(18):
                if s + 1 < 18:
                    self.diag(AS_[(s + 1) & 1], XR + s + 1, SEL)
                if s % 3 == 0:
                    a(f"s_waitcnt vmcnt({younger + 15 - s})")
                self.mfma(D, AS_[s & 1], MB + 4 * s, s == 0)

        def tile_gemv(younger, low, sxs):
            a(f"v_lshl_add_u32 v13, v0, 1, {sxs}\nv_lshl_add_u32 v14, v2, 2, {sxs}")
            a(f"s_mul_i32 s70, s46, {MPS}\ns_lshl_b32 s39, s45, 8\ns_add_u32 s70, s70, s39\ns_add_u32 s70, s70, {MP}")
            if low:
                a(f"s_mul_i32 s72, s46, 4608\ns_add_u32 s72, s39, s72\ns_add_u32 s72, s72, {ML}")
            a(f"s_waitcnt vmcnt({younger + 18})")
            self.silu_to_lds(10, 13, XR)
            for s in range(0, 18, 2):
                a(f"ds_read2_b32 v[{XR+s}:{XR+s+1}], v14 offset0:{4*s} offset1:{4*s+4}")
            a("v_lshlrev_b32 v13, 5, v1\nv_lshl_add_u32 v13, v2, 4, v13")
            a("s_waitcnt lgkmcnt(0)")
            gemv18(younger)
            self.fold2(D, A0)
            if low:
                for r in range(4):
                    a(f"v_and_b32 v{A1+r}, 0xffffff00, v{D+r}")
                for r in range(4):
                    a(f"v_sub_f32 v{A1+r}, v{D+r}, v{A1+r}")
            self.tag4(D, vT)
            a("s_mov_b64 exec, s[78:79]")
            a(f"buffer_store_dwordx4 v[{D}:{D+3}], v13, s[{SW}:{SW+3}], s70 offen sc1")
            if low:
                self.tag4(A1, vT)
                a(f"buffer_store_dwordx4 v[{A1}:{A1+3}], v13, s[{SW}:{SW+3}], s72 offen sc1")
            a("s_mov_b64 exec, -1")

        def cold_tiles():
            a.label("L_tile_a")
            a("s_mov_b32 s78, 0x00ff00ff\ns_mov_b32 s79, 0")
            a(f"s_mul_i32 s71, s46, 384\ns_add_u32 s71, s71, {A_XS}")
            a(f"s_mul_i32 s38, s{S_X}, 18\ns_add_u32 s45, s45, s38\ns_sub_u32 s45, s45, 2")
            a("s_waitcnt lgkmcnt(0)\ns_barrier")
            self.ws_setup()
            self.tag_setup(vT)
            self.sel_setup(SEL, 13, 14, 15)
            self.lds_wait(A_GO, 1, 11, 14, 4, "L_go1")
            a("s_mov_b32 s44, 1")
            a.label("L_tile")
            a("v_lshrrev_b32 v3, 3, v1\nv_lshl_add_u32 v3, v2, 1, v3\nv_and_b32 v4, 7, v1\nv_lshlrev_b32 v4, 4, v4")
            self.srd(SA, P_WM, 576 * 6912)
            a("s_and_b32 s46, s45, 3\ns_lshr_b32 s45, s45, 2\ns_add_u32 s45, s45, 18")
            self.srd(SC, P_C, 1152)
            tile_loads(self.opt.get("dt", 18))
            tile_gemv(0, False, "s71")
            self.in_w = False
            self.stamp(9)
            self.in_w = True
            a("s_cmp_eq_u32 s44, 2\ns_cbranch_scc1 L_qred1")
            a(f"s_sub_u32 s45, s{S_U}, 9\ns_sub_u32 s46, s{S_WAVE}, 4\ns_branch L_mlpw_noinit")
        self.cold.append(cold_tiles)

        def common_setup():
            self.tag_setup(vT)
            self.sel_setup(SEL, 13, 14, 15)
            self.tagbyte(TB, 2, vT)
            a(f"v_lshlrev_b32 v{VCOL}, 2, v8")

        def wo_loads(dep, lo=0, hi=8):
            if lo == 0:
                wo_setup()
            for s in range(lo, hi):
                r = WO + 4 * s
                if s - lo >= dep:
                    a(f"s_waitcnt vmcnt({dep-1})")
                a(f"buffer_load_dwordx4 v[{r}:{r+3}], v{VWO}, s[12:15], s73 offen nt")
                if s < 7:
                    a(f"s_add_u32 s73, s73, {4 * 1152}")

        def wo_setup():
            a(f"v_mul_u32_u24 v{VWO}, 1152, v2\nv_bfe_u32 v6, v0, 3, 1\nv_mul_u32_u24 v6, {32*1152}, v6\nv_and_b32 v7, 7, v1")
            a(f"v_lshl_add_u32 v6, v7, 4, v6\nv_add_u32 v{VWO}, v{VWO}, v6")
            a(f"s_lshl_b32 s73, s{S_X}, 3\ns_add_u32 s73, s73, s{S_WAVE}\ns_mul_i32 s73, s73, {64*1152}\ns_lshl_b32 s39, s{S_U}, 7\ns_add_u32 s73, s73, s39")
            self.srd(12, P_WO, 4096 * 1152)

        a.section("wq0")
        a.label("L_wq")
        self.in_w = True
        if not self.opt.get('nopf'):
            a(f"s_lshl_b32 s38, s{S_U}, 2\ns_add_u32 s38, s38, s{S_WAVE}\ns_cmp_eq_u32 s38, 32\ns_cbranch_scc0 L_wq_nopf")
            self.code_prefetch(MB, 13, 3)
            a.label("L_wq_nopf")
        a(f"s_mul_i32 s69, s{S_U}, {72*8192}\ns_lshl_b32 s70, s{S_X}, 10\ns_add_u32 s69, s69, s70\ns_lshl_b32 s70, s{S_WAVE}, 8\ns_add_u32 s69, s69, s70")
        a("v_lshlrev_b32 v5, 13, v2\nv_lshl_add_u32 v5, v1, 4, v5")
        a("s_waitcnt lgkmcnt(0)")
        self.fstamp(5)
        self.srd(SB, P_WQ, 576 * 8192)
        self.ws_setup()
        a("s_barrier")
        a(f"s_cmp_lt_u32 s{S_U}, 8\ns_cbranch_scc0 L_wq_none")
        DQ = self.opt.get("dq", 5)
        for s in range(18):
            r = MB + 4 * s
            dq = DQ if s < self.opt.get("nq", 18) else self.opt.get("dq2", 12)
            if s >= dq:
                a(f"s_waitcnt vmcnt({dq-1})")
            a(f"buffer_load_dwordx4 v[{r}:{r+3}], v5, s[{SB}:{SB+3}], s69 offen nt")
            if s < 17:
                a(f"s_add_u32 s69, s69, {4*8192}")
            if s == DQ - 1:
                a("s_branch L_wq1")
                a.section("wq1")
                a.label("L_wq1")
            if s == self.opt.get("gow", 10):
                a(f"v_mov_b32 v6, 1\nv_mov_b32 v7, {W_GO}\nds_write_b32 v7, v6")
        self.stamp(1)
        common_setup()
        a(f"s_lshl_b32 s69, s{S_X}, 3\ns_add_u32 s69, s69, s{S_U}\ns_lshl_b32 s69, s69, 12\ns_lshl_b32 s38, s{S_WAVE}, 9\ns_add_u32 s69, s69, s38\ns_add_u32 s69, s69, {QP}")
        a("v_lshrrev_b32 v14, 1, v2\nv_lshlrev_b32 v14, 11, v14\nv_lshl_add_u32 v14, v1, 5, v14\nv_and_b32 v15, 1, v2\nv_lshl_add_u32 v14, v15, 4, v14")
        a(f"v_lshlrev_b32 v13, 2, v2\nv_add_u32 v13, {W_HS}, v13")
        a("s_mov_b32 s76, 0\ns_mov_b32 s77, -1\ns_setprio 2")
        self.lds_wait(W_HF, 1, 9, 10, 1, "L_hf")
        for s in range(0, 18, 2):
            a(f"ds_read2_b32 v[{XR+s}:{XR+s+1}], v13 offset0:{4*s} offset1:{4*s+4}")
        a(f"ds_read_b32 v9, v9 offset:{W_XF-W_HF}")
        a("s_waitcnt lgkmcnt(0)\nv_readfirstlane_b32 s75, v9")
        self.fstamp(9)
        gemv18(0)
        for r in range(4):
            a(f"v_and_b32 v{A1+r}, 0xffffff00, v{D+r}")
        for r in range(4):
            a(f"v_cndmask_b32 v{A1+r}, 0, v{A1+r}, s[76:77]")
        for r in range(4):
            a(f"v_sub_f32 v{D+r}, v{D+r}, v{A1+r}")
        self.tag4(D, vT)
        if self.fast:
            a("s_cmp_lg_u32 s75, 0\ns_cbranch_scc0 L_w_qslow")
            a(f"buffer_store_dwordx4 v[{D}:{D+3}], v14, s[{SW}:{SW+3}], s69 offen")
            a.label("L_w_qst")

            def cold_qs():
                a.label("L_w_qslow")
                a(f"buffer_store_dwordx4 v[{D}:{D+3}], v14, s[{SW}:{SW+3}], s69 offen sc1\ns_branch L_w_qst")
            self.cold.append(cold_qs)
        else:
            a(f"buffer_store_dwordx4 v[{D}:{D+3}], v14, s[{SW}:{SW+3}], s69 offen sc1")
        self.fstamp(8)
        a(f"v_mov_b32 v9, {W_QS}\nv_mov_b32 v10, 1\ns_mov_b64 exec, 1\nds_add_u32 v9, v10\ns_mov_b64 exec, -1")
        a("s_setprio 0\ns_branch L_w_wo")

        def cold_noq():
            a.label("L_wq_none")
            common_setup()
            a.label("L_qred")
            if self.opt.get("c3", 0):
                a(f"s_mul_i32 s38, s{S_X}, 3\ns_add_u32 s38, s38, s{S_WAVE}\ns_sub_u32 s38, s38, 5")
                a(f"s_cmp_ge_u32 s{S_WAVE}, 5\ns_cbranch_scc0 L_qred1\ns_cmp_lt_u32 s38, 18\ns_cbranch_scc0 L_qred1")
                a("s_lshr_b32 s45, s38, 1\ns_lshl_b32 s45, s45, 4\ns_and_b32 s38, s38, 1\ns_add_u32 s45, s45, s38\ns_add_u32 s45, s45, 6")
                a(f"s_mul_i32 s71, s{S_WAVE}, 384\ns_add_u32 s71, s71, {3584 - 5 * 384}")
                if self.opt.get("c3") == 2:
                    self.lds_wait(W_QS, 1, 9, 10, 2, "L_qst")
                a("s_mov_b32 s44, 2\ns_branch L_tile")
            a.label("L_qred1")
            a(f"s_lshl_b32 s70, s{S_X}, 15\ns_lshl_b32 s38, s{S_WAVE}, 8\ns_add_u32 s70, s70, s38\ns_add_u32 s70, s70, {QP}\ns_add_u32 s71, s70, 16384")
            a("v_lshlrev_b32 v12, 12, v2\nv_lshl_add_u32 v12, v1, 4, v12")
            a(f"s_lshl_b32 s47, s{S_X}, 11\ns_add_u32 s47, s47, s38\ns_add_u32 s47, s47, {QB}")
            R = 24
            ql = [f"buffer_load_dwordx4 v[{R+4*k}:{R+4*k+3}], v12, s[{SW}:{SW+3}], s{70 + (k & 1)} offen offset:{2048*(k >> 1)} sc1" for k in range(4)]
            self.lds_wait(W_QS, 1, 9, 10, 4, "L_qsr")
            for t in ql:
                a(t)
            W8 = self.opt.get("w8", 4)
            wo_loads(8, 0, W8)
            a(f"s_cmp_eq_u32 s{S_WAVE}, 6\ns_cbranch_scc0 L_qred2")
            a(f"s_sleep {self.opt.get('xdel', 24)}")
            a(f"v_min_u32 v13, 8, v0\nv_lshlrev_b32 v13, 7, v13\ns_lshl_b32 s74, s{S_X}, 11\ns_add_u32 s74, s74, {XI}")
            self.xi_check(HG, 13, 74, 75, 14)
            a(f"v_mov_b32 v13, 0\nv_mov_b32 v14, s75\nds_write_b32 v13, v14 offset:{W_XF}\nv_mov_b32 v14, 1\nds_write_b32 v13, v14 offset:{W_GO}")
            a.label("L_qred2")
            self.lds_wait(W_GO, 1, 9, 10, 8, "L_gor")
            a(f"v_mov_b32 v9, {W_XF}\nds_read_b32 v9, v9")
            a("s_waitcnt lgkmcnt(0)\nv_readfirstlane_b32 s75, v9")
            self.poll(ql, [R + 4 * k for k in range(4)], [], None, 15, sleep=self.opt.get("rsleep", 1))
            for r in (0, 2, 8, 10):
                a(f"v_pk_add_f32 v[{R+r}:{R+r+1}], v[{R+r}:{R+r+1}], v[{R+4+r}:{R+5+r}]")
            for r in (0, 2):
                a(f"v_pk_add_f32 v[{R+r}:{R+r+1}], v[{R+r}:{R+r+1}], v[{R+8+r}:{R+9+r}]")
            self.rscatter(R)
            self.rnd1(R)
            a(f"v_or3_b32 v{R}, v{R}, v{TB}, s75")
            a(f"buffer_store_dword v{R}, v{VCOL}, s[{SW}:{SW+3}], s47 offen")
            self.stamp(4)
            if self.opt.get("front"):
                a(f"s_mov_b32 s{STB(6)}, s{S_CNT}")
            a(f"v_mov_b32 v9, {W_HF}\nv_mov_b32 v10, 1\ns_mov_b64 exec, 1\nds_add_u32 v9, v10\ns_mov_b64 exec, -1")
            self.lds_wait(W_HF, 8, 11, 14, 1, "L_hf8r")
            wo_loads(8, W8, 8) if W8 else None
            a("s_branch L_w_wod")
            a.label("L_q_again")
            a(f"buffer_store_dword v{R}, v{VCOL}, s[{SW}:{SW+3}], s47 offen sc1\ns_branch L_q_again_done")
        self.cold.append(cold_noq)

        a.section("wo0")
        a.label("L_wo0")
        a("v_lshrrev_b32 v3, 3, v1\nv_lshl_add_u32 v3, v2, 1, v3\nv_and_b32 v4, 7, v1\nv_lshlrev_b32 v4, 4, v4")
        a(f"s_mul_i32 s45, s{S_X}, 9\ns_add_u32 s45, s45, s{S_U}\ns_and_b32 s46, s45, 3\ns_lshr_b32 s45, s45, 2")
        a("v_mov_b32 v6, 0\nv_mov_b32 v10, 0\nv_mov_b32 v11, 0\nv_mov_b32 v12, 0\nv_mov_b32 v13, 0")
        a(f"s_cmp_eq_u32 s{S_WAVE}, 7\ns_cbranch_scc0 L_wo_noinit\nds_write_b128 v6, v[10:13] offset:{W_HF}")
        a.label("L_wo_noinit")
        a("s_waitcnt lgkmcnt(0)")
        self.srd(SA, P_WM, 576 * 6912)
        a(f"s_cmp_eq_u32 s{S_WAVE}, 4\ns_cbranch_scc0 L_w_nom")
        self.srd(SC, P_C, 1152)
        tile_loads()
        a.label("L_w_nom")
        a(f"s_cmp_eq_u32 s{S_WAVE}, 5\ns_cbranch_scc0 L_w_nox")
        self.srd(SC, P_X, 1152)
        a("v_lshlrev_b32 v6, 4, v0\nv_lshlrev_b32 v7, 2, v0")
        a(f"buffer_load_dwordx4 v[{XA}:{XA+3}], v6, s[{SC}:{SC+3}], 0 offen")
        a(f"buffer_load_dword v{XB}, v7, s[{SC}:{SC+3}], 0 offen offset:1024")
        a("v_and_b32 v9, 1, v1\nv_lshl_add_u32 v9, v9, 2, v2\nv_add_u32 v9, 64, v9")
        a(f"s_mul_i32 s38, s{S_U}, 144\nv_lshlrev_b32 v6, 1, v8\nv_lshlrev_b32 v7, 1, v9")
        a(f"buffer_load_ushort v{XO}, v6, s[{SC}:{SC+3}], s38 offen\nbuffer_load_ushort v{XO+1}, v7, s[{SC}:{SC+3}], s38 offen")
        a.label("L_w_nox")
        self.ws_setup()
        a("s_barrier\ns_branch L_wo1")
        a.section("wo1")
        a.label("L_wo1")
        common_setup()
        a(f"s_cmp_eq_u32 s{S_WAVE}, 5\ns_cbranch_scc1 L_w_ln")
        a(f"s_cmp_eq_u32 s{S_WAVE}, 4\ns_cbranch_scc0 L_w_67")
        a("s_setprio 3\ns_getreg_b32 s38, hwreg(HW_REG_XCC_ID, 0, 4)\ns_lshl_b32 s38, s38, 8")
        a(f"v_mov_b32 v{HG}, s38\nv_mov_b32 v{HG+1}, 0\nv_mov_b32 v{HG+2}, 0\nv_mov_b32 v{HG+3}, 0")
        self.tag4(HG, vT)
        a(f"s_lshl_b32 s38, s{S_X}, 4\ns_add_u32 s38, s38, s{S_U}\ns_lshl_b32 s38, s38, 7\ns_add_u32 s38, s38, {XI}")
        a("v_lshlrev_b32 v13, 4, v0\ns_mov_b64 exec, 0xff")
        a(f"buffer_store_dwordx4 v[{HG}:{HG+3}], v13, s[{SW}:{SW+3}], s38 offen sc1")
        a("s_mov_b64 exec, -1")
        tile_gemv(1, True, "0")
        self.stamp(2)
        a(f"s_setprio 0\ns_cmp_lt_u32 s{S_U}, 8\ns_cbranch_scc0 L_w_m8")
        a.label("L_w_wo")
        self.lds_wait(W_QS, self.opt.get("qs", 4), 11, 14, 2, "L_qs")
        wo_loads(self.opt.get("dw", 4))
        a.label("L_w_wod")

        def cold_front():
            a.label("L_w_m8")
            a(f"v_mov_b32 v9, {W_QS}\nv_mov_b32 v10, 1\nds_write_b32 v9, v10\ns_branch L_qred")
            a.label("L_w_67")
            a(f"s_cmp_lt_u32 s{S_U}, 8\ns_cbranch_scc0 L_qred")
            a(f"s_cmp_eq_u32 s{S_WAVE}, 6\ns_cbranch_scc0 L_w_wo")
            self.lds_wait(W_GO, 1, 11, 14, 4, "L_gow6")
            a(f"v_min_u32 v13, 8, v0\nv_lshlrev_b32 v13, 7, v13\ns_lshl_b32 s74, s{S_X}, 11\ns_add_u32 s74, s74, {XI}")
            self.xi_check(HG, 13, 74, 75, 14)
            a(f"v_mov_b32 v13, 0\nv_mov_b32 v14, s75\nds_write_b32 v13, v14 offset:{W_XF}")
            a("s_branch L_w_wo")
            a.label("L_w_ln")
            a(f"s_cmp_lt_u32 s{S_U}, 8\ns_cbranch_scc0 L_qred")
            a("s_setprio 3\ns_waitcnt vmcnt(0)")
            U = 16
            for k in range(5):
                src = XA + k if k < 4 else XB
                a(f"v_lshlrev_b32 v{U+2*k}, 16, v{src}\nv_and_b32 v{U+2*k+1}, 0xffff0000, v{src}")
            a(f"v_add_f32 v10, v{U}, v{U+1}\nv_mul_f32 v11, v{U}, v{U}\nv_fmac_f32 v11, v{U+1}, v{U+1}")
            for k in range(2, 10):
                a(f"v_add_f32 v10, v10, v{U+k}\nv_fmac_f32 v11, v{U+k}, v{U+k}")
            self.row_all("v_add_f32", [10, 11])
            self.xrow_all("v_add_f32", [10, 11], [12, 13])
            a(f"v_mul_f32 v10, {hx(f2u(1.0/576))}, v10\nv_mul_f32 v11, {hx(f2u(1.0/576))}, v11\nv_fma_f32 v11, -v10, v10, v11")
            self.rnd2(10, 11, 12)
            a(f"v_add_f32 v11, {hx(f2u(1e-5))}, v11")
            self.rnd1(11)
            a("v_sqrt_f32 v11, v11")
            self.rnd1(11)
            a("v_rcp_f32 v11, v11")
            a(f"v_lshlrev_b32 v{XO}, 16, v{XO}\nv_lshlrev_b32 v{XO+1}, 16, v{XO+1}")
            a(f"v_sub_f32 v{XO}, v{XO}, v10\nv_sub_f32 v{XO+1}, v{XO+1}, v10")
            self.rnd2(XO, XO + 1, 12)
            a(f"v_mul_f32 v{XO}, v{XO}, v11\nv_mul_f32 v{XO+1}, v{XO+1}, v11")
            self.rnd2(XO, XO + 1, 12)
            a(f"s_mul_i32 s38, s{S_U}, 288\ns_add_u32 s70, s38, {MP}\ns_add_u32 s71, s38, {ML}")
            a(f"v_mul_u32_u24 v12, {MPS}, v2\nv_lshl_add_u32 v12, v1, 4, v12\nv_mul_u32_u24 v13, 4608, v2\nv_lshl_add_u32 v13, v1, 4, v13")
            a("v_and_b32 v14, 1, v1\nv_lshlrev_b32 v14, 4, v14\nv_bfe_u32 v15, v1, 1, 1\nv_mul_u32_u24 v15, 2304, v15\nv_add3_u32 v14, v14, v15, 64")
            a(f"v_add_u32 v14, 192, v14\nv_mul_u32_u24 v15, {MPS}, v2\nv_mul_u32_u24 v10, 4608, v2\nv_add_u32 v10, {ML-MP}, v10")
            a("v_and_b32 v11, 4, v1\nv_cmp_ne_u32 vcc, 0, v11\nv_cndmask_b32 v15, v15, v10, vcc\nv_add_u32 v14, v14, v15")
            a(f"v_add_u32 v10, {W_HS}, v{VCOL}")
            if self.opt.get("hgo", 1):
                self.lds_wait(W_GO, 1, 11, 9, 2, "L_gow5")
            a(f"v_mov_b32 v11, {W_HF}\nv_mov_b32 v9, 1")
            self.fstamp(8)
            H2 = 16

            def hloads(R):
                a(f"buffer_load_dwordx4 v[{R}:{R+3}], v12, s[{SW}:{SW+3}], s70 offen sc1")
                a(f"buffer_load_dwordx4 v[{R+4}:{R+7}], v12, s[{SW}:{SW+3}], s70 offen offset:2304 sc1")
                a(f"buffer_load_dwordx4 v[{R+8}:{R+11}], v13, s[{SW}:{SW+3}], s71 offen sc1")
                a(f"buffer_load_dwordx4 v[{R+12}:{R+15}], v13, s[{SW}:{SW+3}], s71 offen offset:2304 sc1")
                a(f"buffer_load_dwordx4 v[{R+16}:{R+19}], v14, s[{SW}:{SW+3}], s70 offen sc1")
            hloads(HG)
            a(f"s_sleep {self.opt.get('hgap', 8)}")
            hloads(H2)
            a(f"s_mov_b32 s{S_CNT}, 0")
            a.label("L_h_loop")
            self.clean([HG + 4 * k for k in range(5)], [], None, 15, waits=[9, 8, 7, 6, 5])
            a("s_cbranch_vccz L_h_ok")
            hloads(HG)
            self.clean([H2 + 4 * k for k in range(5)], [], None, 15, waits=[9, 8, 7, 6, 5])
            a("s_cbranch_vccz L_h_ok2")
            hloads(H2)
            a(f"s_add_u32 s{S_CNT}, s{S_CNT}, 1\ns_cmp_lt_u32 s{S_CNT}, {SPIN_MAX}\ns_cbranch_scc1 L_h_loop")
            for lab, R in (("L_h_ok2", H2), ("L_h_ok", HG)):
                a.label(lab)
                self.stamp(3)
                if self.opt.get("front"):
                    a(f"s_mov_b32 s{STB(6)}, s{S_CNT}")
                for r in range(4):
                    self.dpp("v_add_f32", R + 16 + r, R + 16 + r, R + 16 + r, "row_ror:12")
                for r in range(0, 8, 2):
                    a(f"v_pk_add_f32 v[{R+r}:{R+r+1}], v[{R+r}:{R+r+1}], v[{R+8+r}:{R+9+r}]")
                for k in (16, 0, 4):
                    self.rscatter(R + k)
                sA, cA, sB, cB = R, R + 4, R + 16, R + 17
                self.dpp("v_mov_b32", cB, sB, None, "row_ror:14")
                self.rnd2(cA, cB, 14)
                self.rnd2(sA, sB, 15)
                a(f"v_add_f32 v{cA}, 1.0, v{cA}\nv_add_f32 v{cB}, 1.0, v{cB}")
                self.rnd2(cA, cB, 14)
                a(f"v_mul_f32 v{cA}, v{cA}, v{XO}\nv_mul_f32 v{cB}, v{cB}, v{XO+1}")
                self.rnd2(cA, cB, 14)
                a(f"v_add_f32 v{cA}, v{cA}, v{sA}\nv_add_f32 v{cB}, v{cB}, v{sB}")
                a(f"v_cvt_pk_bf16_f32 v{cA}, v{cA}, v{cA}\nv_cvt_pk_bf16_f32 v{cB}, v{cB}, v{cB}")
                a(f"ds_write_b32 v10, v{cA}\nds_write_b32 v10, v{cB} offset:256\nds_write_b32 v11, v9")
                if lab == "L_h_ok2":
                    a("s_branch L_h_done")
            a.label("L_h_done")
            a("s_setprio 0\ns_branch L_w_wo")
        self.cold.append(cold_front)

        a(f"s_lshr_b32 s38, s{S_WAVE}, 2\ns_lshl_b32 s39, s{S_X}, 1\ns_add_u32 s38, s38, s39\ns_mul_i32 s38, s38, {12*OPSLOT}")
        a(f"s_add_u32 s38, s38, {OP}\ns_and_b32 s39, s{S_WAVE}, 3\ns_lshl_b32 s70, s39, 8\ns_add_u32 s70, s70, s38")
        a("s_lshr_b32 s39, s39, 1\ns_lshl_b32 s39, s39, 6\ns_add_u32 s71, s38, s39\ns_add_u32 s71, s71, 1024")
        a(f"s_add_u32 s72, s70, {4*OPSLOT}\ns_add_u32 s73, s70, {8*OPSLOT}")
        a(f"v_mul_u32_u24 v10, {OPSLOT}, v2\nv_min_u32 v11, 2, v1\nv_mul_u32_u24 v11, {4*OPSLOT}, v11\nv_add_u32 v11, v11, v10\nv_lshl_add_u32 v10, v1, 4, v10")
        a(f"s_lshl_b32 s38, s{S_WAVE}, 9\ns_add_u32 s38, s38, {W_RED2}")
        a(f"v_and_b32 v14, 7, v1\nv_lshlrev_b32 v14, 5, v14\nv_and_b32 v15, 1, v2\nv_lshl_add_u32 v14, v15, 4, v14\nv_lshrrev_b32 v15, 1, v2")
        a(f"v_lshl_add_u32 v14, v15, 8, v14\nv_add_u32 v{VRW}, s38, v14\ns_mov_b32 s79, 0xff00ff00")
        a(f"v_lshlrev_b32 v{VRR}, 4, v0\nv_add_u32 v{VRR}, {W_RED2}, v{VRR}")
        a(f"s_mul_i32 s69, s{S_X}, 2304\ns_lshl_b32 s39, s{S_U}, 8\ns_add_u32 s69, s69, s39")
        if self.opt.get("apr", 1):
            a(f"s_mul_i32 s39, s{S_WAVE}, 18432\ns_add_u32 s69, s69, s39\ns_add_u32 s69, s69, {APR}")
        else:
            a(f"s_add_u32 s69, s69, {AP}")
        a("s_mov_b32 s76, 0x00070007\ns_mov_b32 s77, 0x00070007\ns_mov_b32 s74, 0xffffff00")
        self.stamp(5)
        oloads = [f"buffer_load_dwordx4 v[{OG+4*t}:{OG+4*t+3}], v10, s[{SW}:{SW+3}], s{(70, 72, 73)[t]} offen sc1" for t in range(3)]
        for t in oloads:
            a(t)
        a(f"s_waitcnt vmcnt(3)\ns_cmp_eq_u32 s{S_U}, 8\ns_cbranch_scc1 L_q_again")
        a.label("L_q_again_done")
        self.poll([f"buffer_load_dwordx4 v[{ST}:{ST+3}], v11, s[{SW}:{SW+3}], s71 offen sc1"], [ST], [], None, 14, sleep=2)
        quad = ("quad_perm:[1,0,3,2]", "quad_perm:[2,3,0,1]")
        a(f"v_mov_b32 v14, v{ST}")
        self.row_all("v_max_f32", [14], quad)
        self.xrow_all("v_max_f32", [14], [15])
        a(f"v_sub_f32 v{ST}, v{ST}, v14\nv_mul_f32 v{ST}, {hx(f2u(LOG2E))}, v{ST}\nv_exp_f32 v{ST}, v{ST}")
        a(f"v_cndmask_b32 v{ST}, 0, v{ST}, s[76:77]\nv_mul_f32 v{ST+1}, v{ST}, v{ST+1}")
        self.row_all("v_add_f32", [ST + 1], quad)
        self.xrow_all("v_add_f32", [ST + 1], [15])
        a(f"v_rcp_f32 v{ST+1}, v{ST+1}\nv_mul_f32 v{ST}, v{ST}, v{ST+1}")
        for t in range(3):
            self.dpp("v_mov_b32", ST + 1 + t, ST, None, f"row_newbcast:{t}")
        if self.opt.get("p2", 0):
            OC = 24

            def ouse(o):
                self.stamp(6)
                for r in range(4):
                    a(f"v_mul_f32 v{OC+r}, v{ST+1}, v{OG+o+r}")
                for t in (1, 2):
                    for r in range(4):
                        a(f"v_fmac_f32 v{OC+r}, v{ST+1+t}, v{OG+o+4*t+r}")
            self.poll2(lambda o: [f"buffer_load_dwordx4 v[{OG+o+4*t}:{OG+o+4*t+3}], v10, s[{SW}:{SW+3}], s{(70, 72, 73)[t]} offen sc1" for t in range(3)],
                       [OG + 4 * k for k in range(3)], 12, 14, ouse, self.opt.get("pg", 2))
        else:
            OC = OG
            self.poll(oloads, [OG + 4 * k for k in range(3)], [], None, 14)
            self.stamp(6)
            for r in range(4):
                a(f"v_mul_f32 v{OG+r}, v{ST+1}, v{OG+r}")
            for t in (1, 2):
                for r in range(4):
                    a(f"v_fmac_f32 v{OG+r}, v{ST+1+t}, v{OG+4*t+r}")
        self.rscatter(OC)
        self.dpp("v_mov_b32", 15, OC, None, "row_ror:8")
        a(f"v_cvt_pk_bf16_f32 v14, v{OC}, v15")
        XS_ = (16, 17)
        self.dpp("v_mov_b32", 16, 14, None, "row_newbcast:0")
        self.dpp("v_mov_b32", 17, 14, None, "row_newbcast:1")
        self.diag(A0, 16, SEL)
        for s in range(8):
            if s + 1 < 8:
                self.diag(AS_[(s + 1) & 1], XS_[(s + 1) & 1], SEL)
            self.mfma(D, AS_[s & 1], WO + 4 * s, s == 0)
            if s + 2 < 8:
                self.dpp("v_mov_b32", XS_[s & 1], 14, None, f"row_newbcast:{s+2}")
        a("s_mov_b64 exec, s[78:79]")
        a(f"ds_write_b128 v{VRW}, v[{D}:{D+3}]")
        a("s_mov_b64 exec, -1\ns_waitcnt lgkmcnt(0)\ns_barrier")
        for k in range(4):
            a(f"ds_read_b128 v[{16+4*k}:{19+4*k}], v{VRR} offset:{1024*k}")
        a("s_waitcnt lgkmcnt(2)" if not self.stamps else "s_waitcnt lgkmcnt(0)")
        a("v_pk_add_f32 v[16:17], v[16:17], v[20:21]\nv_pk_add_f32 v[18:19], v[18:19], v[22:23]\ns_waitcnt lgkmcnt(0)")
        a("v_pk_add_f32 v[24:25], v[24:25], v[28:29]\nv_pk_add_f32 v[26:27], v[26:27], v[30:31]")
        a("v_pk_add_f32 v[16:17], v[16:17], v[24:25]\nv_pk_add_f32 v[18:19], v[18:19], v[26:27]")
        self.rscatter(16)
        a(f"v_and_or_b32 v16, v16, s74, v{TB}")
        a(f"buffer_store_dword v16, v{VCOL}, s[{SW}:{SW+3}], s69 offen sc1")
        self.stamp(7)
        if self.opt.get("f18", 1):
            a.label("L_w_fin")
            a(f"s_mul_i32 s70, s{S_X}, 9\ns_add_u32 s70, s70, s{S_U}\ns_and_b32 s38, s70, 3\ns_cmp_eq_u32 s38, 0\ns_cbranch_scc0 L_w_exit")
            a(f"s_cmp_ge_u32 s{S_WAVE}, 6\ns_cbranch_scc1 L_w_exit")
            a("s_lshl_b32 s70, s70, 5\ns_lshr_b32 s71, s70, 1")
            a("v_and_b32 v10, 7, v0\nv_lshlrev_b32 v10, 4, v10\nv_lshrrev_b32 v11, 3, v0\nv_mul_u32_u24 v11, 2304, v11\nv_add_u32 v11, v11, v10")
            a("v_lshl_add_u32 v15, v2, 2, v10\nv_lshrrev_b32 v12, 1, v15")
            self.srd(SC, P_OUT, 1152)
            a("s_mov_b32 s76, 0x00ff00ff\ns_mov_b32 s77, 0x00ff00ff")
            a(f"s_cmp_eq_u32 s{S_WAVE}, 0\ns_cbranch_scc0 L_w_fin3")
            self.srd(SA, P_X, 1152)
            self.srd(SB, P_B2, 1152)
            a(f"buffer_load_ushort v20, v12, s[{SA}:{SA+3}], s71 offen\nbuffer_load_ushort v21, v12, s[{SB}:{SB+3}], s71 offen")
            a(f"buffer_load_ushort v25, v12, s[{SC}:{SC+3}], s71 offen")
            a(f"v_bfe_u32 v26, v0, 3, 2\nv_mul_u32_u24 v26, {MPS}, v26\nv_lshrrev_b32 v27, 5, v0\nv_mul_u32_u24 v27, 6912, v27\nv_add3_u32 v26, v26, v27, v10")
            a(f"s_add_u32 s72, s70, {MP+4608}\ns_mul_i32 s74, s{S_X}, 18432\ns_add_u32 s74, s74, s70\ns_add_u32 s74, s74, {APR}")
            self.poll([f"buffer_load_dwordx4 v[28:31], v26, s[{SW}:{SW+3}], s72 offen sc1",
                       f"buffer_load_dwordx4 v[32:35], v11, s[{SW}:{SW+3}], s74 offen sc1"], [28, 32], [], None, 27, sleep=1)
            a("v_permlane16_swap_b32 v28, v29\nv_permlane16_swap_b32 v30, v31")
            a("v_add_f32 v22, v28, v29\nv_add_f32 v23, v30, v31")
            self.rscatter(32)
            a("v_permlane32_swap_b32 v22, v23")
            self.dpp("v_add_f32", 24, 32, 32, "row_ror:8")
            self.dpp("v_add_f32", 22, 22, 22, "row_ror:8")
            self.dpp("v_add_f32", 23, 23, 23, "row_ror:8")
            a("v_lshlrev_b32 v20, 16, v20\nv_lshlrev_b32 v21, 16, v21")
            self.rnd2(22, 23, 26)
            self.rnd1(24)
            a("v_mul_f32 v24, v24, v22")
            self.rnd1(24)
            a("v_add_f32 v24, v24, v20")
            self.rnd1(24)
            if self.opt.get("fg", 0):
                if self.opt.get("fdel", 0):
                    a(f"s_sleep {self.opt['fdel']}")
                a(f"v_mov_b32 v26, {W_QS}\nv_mov_b32 v27, 64\nds_write_b32 v26, v27")
            a.label("L_w_fin3")
            if self.opt.get("fg", 0):
                self.lds_wait(W_QS, 64, 26, 27, 2, "L_fg")
            a(f"s_mul_i32 s72, s{S_WAVE}, {24*2304}\ns_add_u32 s72, s72, s70\ns_add_u32 s72, s72, {FP}")
            a(f"s_add_u32 s73, s72, {8*2304}\ns_add_u32 s74, s72, {16*2304}")
            a(f"s_lshl_b32 s38, s{S_WAVE}, 7\ns_add_u32 s38, s38, {W_FIN2}\nv_add_u32 v14, s38, v15\nv_add_u32 v15, {W_FIN2}, v15")
            self.stamp(8)
            self.poll([f"buffer_load_dwordx4 v[{36+4*k}:{39+4*k}], v11, s[{SW}:{SW+3}], s{72+k} offen sc1" for k in range(3)], [36, 40, 44], [], None, 19, sleep=self.opt.get("fsl", 0))
            a("v_pk_add_f32 v[36:37], v[36:37], v[40:41]\nv_pk_add_f32 v[38:39], v[38:39], v[42:43]")
            a("v_pk_add_f32 v[36:37], v[36:37], v[44:45]\nv_pk_add_f32 v[38:39], v[38:39], v[46:47]")
            self.rscatter(36)
            self.dpp("v_add_f32", 36, 36, 36, "row_ror:8")
            a("s_mov_b64 exec, s[76:77]\nds_write_b32 v14, v36\ns_waitcnt lgkmcnt(0)\ns_barrier")
            a(f"s_cmp_eq_u32 s{S_WAVE}, 0\ns_cbranch_scc0 L_w_exit")
            for k in range(3):
                a(f"ds_read2_b32 v[{26+2*k}:{27+2*k}], v15 offset0:{64*k} offset1:{64*k+32}")
            a("s_waitcnt lgkmcnt(0)")
            a("v_pk_add_f32 v[26:27], v[26:27], v[28:29]\nv_pk_add_f32 v[26:27], v[26:27], v[30:31]\nv_add_f32 v26, v26, v27")
            self.rnd1(26)
            a("v_add_f32 v26, v26, v21")
            self.rnd1(26)
            a("v_mul_f32 v26, v26, v23")
            self.rnd1(26)
            a("v_add_f32 v26, v26, v24\nv_cvt_pk_bf16_f32 v26, v26, v26")
            a(f"buffer_store_short v26, v12, s[{SC}:{SC+3}], s71 offen")
        else:
            a.label("L_w_fin")
            a(f"s_cmp_ge_u32 s{S_WAVE}, 6\ns_cbranch_scc1 L_w_exit")
            a("v_and_b32 v12, 3, v0")
            self.tagbyte(13, 12, vT)
            if self.opt.get("fmap", 1):
                a(f"s_mul_i32 s70, s{S_X}, 9\ns_add_u32 s70, s70, s{S_U}\ns_lshl_b32 s70, s70, 5")
            else:
                a(f"s_lshl_b32 s70, s{S_U}, 8\ns_lshl_b32 s39, s{S_X}, 5\ns_add_u32 s70, s70, s39")
            a("v_and_b32 v10, 7, v0\nv_lshlrev_b32 v10, 2, v10\nv_lshrrev_b32 v11, 3, v0\nv_mul_u32_u24 v11, 2304, v11\nv_add_u32 v11, v11, v10")
            self.srd(SC, P_OUT, 1152)
            a("s_lshr_b32 s71, s70, 1\nv_lshrrev_b32 v12, 1, v10")
            a(f"s_cmp_eq_u32 s{S_WAVE}, 0\ns_cbranch_scc0 L_w_fin3")
            self.srd(SA, P_X, 1152)
            self.srd(SB, P_B2, 1152)
            a(f"buffer_load_ushort v20, v12, s[{SA}:{SA+3}], s71 offen\nbuffer_load_ushort v21, v12, s[{SB}:{SB+3}], s71 offen")
            a(f"buffer_load_ushort v25, v12, s[{SC}:{SC+3}], s71 offen")
            a(f"v_bfe_u32 v26, v0, 3, 2\nv_mul_u32_u24 v26, {MPS}, v26\nv_lshrrev_b32 v27, 5, v0\nv_mul_u32_u24 v27, 6912, v27\nv_add3_u32 v26, v26, v27, v10")
            a(f"s_add_u32 s72, s70, {MP+4608}")
            if self.opt.get("apr", 1):
                a(f"s_mul_i32 s74, s{S_X}, 18432\ns_add_u32 s74, s74, s70\ns_add_u32 s74, s74, {APR}")
            else:
                a(f"s_add_u32 s74, s70, {AP}")
            self.poll([f"buffer_load_dword v22, v26, s[{SW}:{SW+3}], s72 offen sc1",
                       f"buffer_load_dword v24, v11, s[{SW}:{SW+3}], s74 offen sc1"], [], [22, 24], 13, 27, sleep=1)
            self.dpp("v_add_f32", 22, 22, 22, "row_ror:8")
            self.dpp("v_add_f32", 24, 24, 24, "row_ror:8")
            a("v_mov_b32 v26, v22\nv_mov_b32 v27, v24\nv_permlane16_swap_b32 v26, v22\nv_permlane16_swap_b32 v27, v24")
            a("v_add_f32 v22, v22, v26\nv_add_f32 v24, v24, v27\nv_mov_b32 v27, v24\nv_permlane32_swap_b32 v22, v23\nv_permlane32_swap_b32 v27, v24")
            a("v_add_f32 v24, v24, v27\nv_lshlrev_b32 v20, 16, v20\nv_lshlrev_b32 v21, 16, v21")
            self.rnd2(22, 23, 26)
            self.rnd1(24)
            a("v_mul_f32 v24, v24, v22")
            self.rnd1(24)
            a("v_add_f32 v24, v24, v20")
            self.rnd1(24)
            if self.opt.get("fg", 0):
                if self.opt.get("fdel", 0):
                    a(f"s_sleep {self.opt['fdel']}")
                a(f"v_mov_b32 v26, {W_QS}\nv_mov_b32 v27, 64\nds_write_b32 v26, v27")
            a.label("L_w_fin3")
            if self.opt.get("fg", 0):
                self.lds_wait(W_QS, 64, 26, 27, 2, "L_fg")
            a(f"s_mul_i32 s72, s{S_WAVE}, {24*2304}\ns_add_u32 s72, s72, s70\ns_add_u32 s72, s72, {FP}")
            a(f"s_add_u32 s73, s72, {8*2304}\ns_add_u32 s74, s72, {16*2304}")
            a(f"s_lshl_b32 s38, s{S_WAVE}, 5\ns_add_u32 s38, s38, {W_FIN}\nv_add_u32 v14, s38, v10\nv_add_u32 v15, {W_FIN}, v10")
            self.stamp(8)
            if self.opt.get("fp2", 0):
                def fl(R):
                    for k in range(3):
                        a(f"buffer_load_dword v{R+k}, v11, s[{SW}:{SW+3}], s{72+k} offen sc1")
                fl(16)
                a(f"s_sleep {self.opt['fp2']}")
                fl(32)
                a(f"s_mov_b32 s{S_CNT}, 0")
                a.label("L_f_loop")
                self.clean([], [16, 17, 18], 13, 19, waits=[5, 4, 3])
                a("s_cbranch_vccz L_f_ok")
                fl(16)
                self.clean([], [32, 33, 34], 13, 19, waits=[5, 4, 3])
                a("s_cbranch_vccz L_f_ok2")
                fl(32)
                a(f"s_add_u32 s{S_CNT}, s{S_CNT}, 1\ns_cmp_lt_u32 s{S_CNT}, {SPIN_MAX}\ns_cbranch_scc1 L_f_loop")
                a.label("L_f_ok2")
                a("v_add_f32 v35, v32, v33\nv_add_f32 v35, v35, v34\ns_branch L_f_sum")
                a.label("L_f_ok")
                a("v_add_f32 v35, v16, v17\nv_add_f32 v35, v35, v18")
                a.label("L_f_sum")
                a("s_nop 1")
                self.dpp("v_add_f32", 35, 35, 35, "row_ror:8")
                self.xrow_all("v_add_f32", [35], [36])
                FS = 35
            else:
                self.poll([f"buffer_load_dword v{16+k}, v11, s[{SW}:{SW+3}], s{72+k} offen sc1" for k in range(3)], [], [16, 17, 18], 13, 19, sleep=self.opt.get("fsl", 0))
                a("v_add_f32 v16, v16, v17\nv_add_f32 v16, v16, v18")
                FS = 16
            if FS == 16:
                self.dpp("v_add_f32", 16, 16, 16, "row_ror:8")
                self.xrow_all("v_add_f32", [16], [17])
            a(f"s_mov_b64 exec, 0xff\nds_write_b32 v14, v{FS}\ns_waitcnt lgkmcnt(0)\ns_barrier")
            a(f"s_cmp_eq_u32 s{S_WAVE}, 0\ns_cbranch_scc0 L_w_exit")
            for k in range(3):
                a(f"ds_read2_b32 v[{26+2*k}:{27+2*k}], v15 offset0:{16*k} offset1:{16*k+8}")
            a("s_waitcnt lgkmcnt(0)")
            a("v_add_f32 v26, v26, v27\nv_add_f32 v28, v28, v29\nv_add_f32 v30, v30, v31\nv_add_f32 v26, v26, v28\nv_add_f32 v26, v26, v30")
            self.rnd1(26)
            a("v_add_f32 v26, v26, v21")
            self.rnd1(26)
            a("v_mul_f32 v26, v26, v23")
            self.rnd1(26)
            a("v_add_f32 v26, v26, v24\nv_cvt_pk_bf16_f32 v26, v26, v26")
            a(f"buffer_store_short v26, v12, s[{SC}:{SC+3}], s71 offen")
        a("s_cmp_eq_u32 s2, 0\ns_cbranch_scc0 L_w_exit")
        a(f"s_mov_b64 exec, 1\nv_mov_b32 v27, 0\nbuffer_store_dword v{vT}, v27, s[{SW}:{SW+3}], 0 offen offset:{EP}")
        if self.opt.get("pin"):
            a(f"s_add_u32 s100, s100, {self.opt['pin']}")
            a.label("L_pin")
            a("s_memrealtime s[98:99]\ns_waitcnt lgkmcnt(0)\ns_sub_u32 s98, s98, s100\ns_cmp_lt_i32 s98, 0\ns_cbranch_scc1 L_pin")
        a.label("L_w_exit")
        a("s_mov_b64 exec, -1")
        self.stamp(9)
        self.dump_stamps()
        a("s_endpgm")


HEAD = f"""; fused adaLN-conditioned decode block: one persistent launch, 256 workgroups (one per CU), hand-offs through d_ws
; @launch grid=(256,1,1) block=(512,1,1) lds={LDS_BYTES}
.amdgcn_target "amdgcn-amd-amdhsa--gfx950"
.text
.globl {NAME}_kernel
.p2align 8
.type {NAME}_kernel,@function
"""
TAIL = f""".section .rodata,"a"
.p2align 6
.amdhsa_kernel {NAME}_kernel
  .amdhsa_next_free_vgpr 256
  .amdhsa_next_free_sgpr 102
  .amdhsa_accum_offset 256
  .amdhsa_group_segment_fixed_size 0
  .amdhsa_kernarg_size 120
  .amdhsa_user_sgpr_count 2
  .amdhsa_user_sgpr_kernarg_segment_ptr 1
  .amdhsa_system_sgpr_workgroup_id_x 1
  .amdhsa_float_denorm_mode_32 3
.end_amdhsa_kernel
"""


def generate(stamps=False, fast=True, opt=None):
    g = G(stamps, fast, opt)
    body = g.build()
    opt = opt or {}
    L = []
    for ln in body.split("\n"):
        t = ln.strip()
        if t.startswith("buffer_load") and not t.endswith(" nt"):
            if t.endswith("sc1"):
                if opt.get("ntpoll"):
                    ln += " nt"
            elif opt.get("ntsmall"):
                ln += " nt"
        if t.startswith("global_load") and opt.get("ntsmall"):
            ln += " nt"
        if t.startswith("buffer_store") and t.endswith("sc1") and opt.get("ntstore"):
            ln += " nt"
        L.append(ln)
    return HEAD + "\n".join(L) + TAIL


if __name__ == "__main__":
    out = sys.argv[1]
    stamps = "stamps" in sys.argv[2:]
    fast = "nofast" not in sys.argv[2:]
    opt = {}
    for arg in sys.argv[2:]:
        if "=" in arg:
            k, v = arg.split("=")
            opt[k] = int(v) if v.lstrip("-").isdigit() else v
    open(out, "w").write(generate(stamps, fast, opt))
```
